```python
import torch

def _softmax(x, axis=-1):
    return torch.softmax(x, dim=axis)
def _gelu(x):
    return torch.nn.functional.gelu(x, approximate="tanh")
def _silu(x):
    return torch.nn.functional.silu(x)
def _sigmoid(x):
    return torch.sigmoid(x)
def _layernorm(x, axis=-1, eps=1e-5):
    m = x.mean(dim=axis, keepdim=True)
    v = x.var(dim=axis, keepdim=True, unbiased=False)
    return (x - m) / torch.sqrt(v + eps)
def _scatter_add(tgt, idx, src, axis=0):
    return tgt.clone().index_add_(axis, idx, src)
def _segment_sum(src, seg, n):
    out = torch.zeros((n,) + src.shape[1:], dtype=src.dtype)
    return out.index_add_(0, seg, src)
def _pad(x, pw):
    flat = tuple(v for pair in reversed(pw) for v in pair)
    return torch.nn.functional.pad(x, flat)

kernel_name = 'sequential_preLN__gqa_block_cached__geglu_ffn__decode'

def setup_inputs():

    _w = (lambda a: (lambda t: t.to(torch.bfloat16) if t.is_floating_point() else t)(torch.as_tensor(a)))
    def _A_setup():
        B, Sq, D = 1, 1, 512
        Hq, Hkv, Sk, Dh = 32, 8, 65536, 128
        assert Hq % Hkv == 0, (Hq, Hkv)
        return {
            "x": _w((lambda *s: torch.randn(*s, dtype=torch.bfloat16) * 0.05)(B, Sq, D)),
            "k_cache": _w((lambda *s: torch.randn(*s, dtype=torch.bfloat16) * 3.2)(B, Hkv, Sk, Dh)),
            "v_cache": _w((lambda *s: torch.randn(*s, dtype=torch.bfloat16) * 0.4)(B, Hkv, Sk, Dh)),
            "wq": _w((lambda *s: torch.randn(*s, dtype=torch.bfloat16) * 3.2)(D, Hq * Dh) * (D ** -0.5)),
            "wo": _w((lambda *s: torch.randn(*s, dtype=torch.bfloat16) * 0.4)(Hq * Dh, D) * ((Hq * Dh) ** -0.5)),
        }
    _A_in = _A_setup()

    def _B_setup():
        B, S, D, F = 1, 1, 512, 1792
        return {
            "x": _w((lambda *s: torch.randn(*s, dtype=torch.bfloat16) * 0.05)(B, S, D)),
            "w_gate": _w((lambda *s: torch.randn(*s, dtype=torch.bfloat16) * 0.05)(D, F)),
            "w_up": _w((lambda *s: torch.randn(*s, dtype=torch.bfloat16) * 0.05)(D, F)),
            "w_down": _w((lambda *s: torch.randn(*s, dtype=torch.bfloat16) * 0.05)(F, D)),
        }
    _B_in = _B_setup()

    return {
        "A_x": _A_in["x"],
        "A_k_cache": _A_in["k_cache"],
        "A_v_cache": _A_in["v_cache"],
        "A_wq": _A_in["wq"],
        "A_wo": _A_in["wo"],
        "B_x": _B_in["x"],
        "B_w_gate": _B_in["w_gate"],
        "B_w_up": _B_in["w_up"],
        "B_w_down": _B_in["w_down"],
    }

def reference(A_x, A_k_cache, A_v_cache, A_wq, A_wo, B_x, B_w_gate, B_w_up, B_w_down):
    def _A_ref(x, k_cache, v_cache, wq, wo):
        B, Sq, D = x.shape
        Hq, Dh = 32, 128
        Hkv = k_cache.shape[1]
        rep = Hq // Hkv
        q = (lambda x, *d: x.permute(*d))((x @ wq).reshape(B, Sq, Hq, Dh), 0, 2, 1, 3)
        k = (lambda x, n, axis: torch.repeat_interleave(x, n, dim=axis))(k_cache, rep, axis=1)
        v = (lambda x, n, axis: torch.repeat_interleave(x, n, dim=axis))(v_cache, rep, axis=1)
        scores = torch.einsum("bhqd,bhkd->bhqk", q, k) * (Dh ** -0.5)
        p = _softmax(scores, axis=-1)
        o = torch.einsum("bhqk,bhkd->bhqd", p, v)
        return (lambda x, *d: x.permute(*d))(o, 0, 2, 1, 3).reshape(B, Sq, Hq * Dh) @ wo

    def _B_ref(x, w_gate, w_up, w_down):
        return (_gelu(x @ w_gate) * (x @ w_up)) @ w_down

    x = A_x
    h = x + _A_ref(_layernorm(x, axis=-1), A_k_cache, A_v_cache, A_wq, A_wo)
    h2 = h + _B_ref(_layernorm(h, axis=-1), B_w_gate, B_w_up, B_w_down)
    return h2
```

```python
import re

def _regs(tok):
    tok = tok.strip()
    neg = tok.lstrip('-').strip('|')
    tok = neg
    m = re.fullmatch(r'([vsa])(\d+)', tok)
    if m: return {(m.group(1), int(m.group(2)))}
    m = re.fullmatch(r'([vsa])\[(\d+):(\d+)\]', tok)
    if m: return {(m.group(1), i) for i in range(int(m.group(2)), int(m.group(3)) + 1)}
    if tok == 'vcc': return {('s', 106), ('s', 107)}
    if tok == 'vcc_lo': return {('s', 106)}
    if tok == 'vcc_hi': return {('s', 107)}
    if tok == 'exec': return {('s', 126), ('s', 127)}
    if tok == 'm0': return {('s', 124)}
    return set()

TRANS = ('v_exp_f32', 'v_log_f32', 'v_rcp_f32', 'v_rsq_f32', 'v_sqrt_f32', 'v_sin_f32', 'v_cos_f32', 'v_rcp_iflag_f32')
RMW = ('v_fmac_f32', 'v_dot2c_f32_bf16', 'v_writelane_b32', 'v_mac_f32', 'v_pk_fmac_f16')

class Ins:
    def __init__(self, text):
        self.text = text
        t = text.split(';')[0].strip()
        self.is_label = t.endswith(':') and ' ' not in t
        self.is_dir = t.startswith('.') or t == ''
        if self.is_label or self.is_dir:
            self.op = ''; self.ops = []; self.kind = 'none'; self.w = set(); self.r = set(); return
        parts = t.split(None, 1)
        self.op = parts[0]
        rest = parts[1] if len(parts) > 1 else ''
        ops = []; cur = ''; depth = 0
        for ch in rest:
            if ch in '[(': depth += 1
            if ch in '])': depth -= 1
            if ch == ',' and depth == 0: ops.append(cur.strip()); cur = ''
            else: cur += ch
        if cur.strip(): ops.append(cur.strip())
        self.mods = ''
        if ops:
            sp = ops[-1].split(None, 1)
            ops[-1] = sp[0]
            if len(sp) > 1: self.mods = sp[1]
        self.ops = ops
        op = self.op
        R = [_regs(o) for o in ops]
        allr = set().union(*R) if R else set()
        self.dpp = ('row_' in self.mods or 'quad_perm' in self.mods or 'wave_' in self.mods or op.endswith('_dpp'))
        self.w = set(); self.r = set()
        base = re.sub(r'_(e32|e64|dpp|sdwa)$', '', op)
        self.base = base
        if op.startswith('v_mfma') or op.startswith('v_smfmac'):
            self.kind = 'mfma'
            self.w = R[0]; self.a = R[1]; self.b = R[2]; self.c = R[3] if len(R) > 3 else set()
            self.r = self.a | self.b | self.c
            self.passes = 8 if '32x32' in op else 4
            if '4x4x4' in op: self.passes = 2
        elif op.startswith('v_'):
            self.kind = 'valu'
            if base.startswith('v_permlane') and 'swap' in base:
                self.w = R[0] | R[1]; self.r = R[0] | R[1]
            elif base.startswith('v_cmpx'):
                self.w = _regs('exec'); self.r = set().union(*R)
            elif base.startswith('v_cmp'):
                self.w = R[0]; self.r = set().union(*R[1:])
            elif base in ('v_add_co_u32', 'v_sub_co_u32', 'v_subrev_co_u32', 'v_addc_co_u32', 'v_subb_co_u32', 'v_div_scale_f32', 'v_mad_u64_u32'):
                self.w = R[0] | R[1]; self.r = set().union(*R[2:])
            elif base == 'v_nop':
                pass
            else:
                self.w = R[0]; self.r = set().union(*R[1:]) if len(R) > 1 else set()
                if base in RMW: self.r |= R[0]
                if base == 'v_cndmask_b32' and len(ops) == 3: self.r |= _regs('vcc')
                if self.dpp: self.r |= R[0]
            self.trans = base in TRANS
        elif op.startswith('ds_'):
            self.kind = 'ds'
            if op.startswith(('ds_read', 'ds_bpermute', 'ds_permute', 'ds_swizzle')) or '_rtn' in op:
                self.w = R[0]; self.r = set().union(*R[1:]) if len(R) > 1 else set()
            else:
                self.r = allr
        elif op.startswith(('buffer_', 'global_', 'flat_', 'scratch_')):
            self.kind = 'vmem'
            self.lds = bool(re.search(r'\blds\b', self.mods)) or '_lds_' in op
            isload = 'load' in op
            isatomic = 'atomic' in op
            if isload and not self.lds:
                self.w = R[0]; self.r = set().union(*R[1:])
            elif isatomic and 'sc0' in self.mods and op.startswith('global'):
                self.w = R[0]; self.r = set().union(*R[1:])
            else:
                self.r = allr
            self.wide_store = ('store' in op and ('x3' in op or 'x4' in op))
            self.sdata = set()
            if self.wide_store:
                self.sdata = R[0] if op.startswith('buffer') else R[1]
        elif op.startswith('s_'):
            self.kind = 'salu'
            if op.startswith(('s_cmp', 's_bitcmp', 's_cbranch', 's_branch', 's_waitcnt', 's_nop', 's_barrier', 's_endpgm', 's_sleep', 's_setprio', 's_setreg')):
                self.r = allr
            elif op.startswith(('s_load', 's_buffer_load', 's_memrealtime', 's_memtime')):
                self.kind = 'smem'; self.w = R[0]; self.r = set().union(*R[1:]) if len(R) > 1 else set()
            else:
                self.w = R[0] if R else set(); self.r = set().union(*R[1:]) if len(R) > 1 else set()
                if 'saveexec' in op: self.w |= _regs('exec'); self.r |= _regs('exec')
        else:
            raise ValueError("unknown op: " + text)

    def states(self):
        if self.kind == 'none': return 0
        if self.op == 's_nop': return int(self.ops[0], 0) + 1
        return 1

def isv(x): return x[0] in 'va'
def need(p, c):
    n = 0
    if p.kind == 'valu':
        wv = {x for x in p.w if isv(x)}; ws = {x for x in p.w if x[0] == 's'}
        if c.kind == 'mfma' and wv & c.r: n = max(n, 2)
        if c.kind == 'valu':
            if getattr(p, 'trans', False) and wv & c.r and not getattr(c, 'trans', False): n = max(n, 1)
            if getattr(p, 'trans', False) and wv & c.r: n = max(n, 1)
            if c.dpp and wv & c.r: n = max(n, 2)
            if c.base in ('v_readlane_b32', 'v_readfirstlane_b32') and wv & c.r: n = max(n, 1)
            if c.base.startswith('v_permlane') and wv & c.r: n = max(n, 2)
            if ws & c.r:
                n = max(n, 2)
                if c.base in ('v_readlane_b32', 'v_writelane_b32'): n = max(n, 4)
            if ws & _regs('exec'):
                if c.dpp: n = max(n, 5)
                if c.base in ('v_readlane_b32', 'v_readfirstlane_b32', 'v_writelane_b32') or c.base.startswith('v_permlane'): n = max(n, 4)
            if 'sdwa' in p.op or 'op_sel' in getattr(p, 'mods', ''):
                if wv & c.r: n = max(n, 1)
        if c.kind == 'mfma' and ws & _regs('exec'): n = max(n, 4)
        if c.kind == 'vmem' and ws & c.r: n = max(n, 5)
        if p.base.startswith('v_dot') and c.kind in ('valu', 'mfma', 'vmem', 'ds') and (wv & (c.r | c.w)):
            if not (c.kind == 'valu' and c.base == p.base and not (wv & (c.r - _regs(c.ops[0])))): n = max(n, 3)
    if p.kind == 'mfma':
        big = {2: 5, 4: 8, 8: 12, 16: 20}[p.passes]
        part = {2: 4, 4: 6, 8: 10, 16: 18}[p.passes]
        war = {2: 1, 4: 3, 8: 7, 16: 15}[p.passes]
        if c.kind == 'mfma':
            if p.w & (c.a | c.b): n = max(n, big)
            if p.w & c.c:
                if p.w == c.c and p.passes == c.passes: n = max(n, 2 if p.passes == 2 else 0)
                else: n = max(n, part)
            elif p.w & c.w: n = max(n, big)
        elif c.kind in ('valu', 'vmem', 'ds'):
            if p.w & (c.r | c.w): n = max(n, big)
            if c.kind == 'valu' and p.c & c.w: n = max(n, war)
    if p.kind == 'salu':
        if ('s', 124) in p.w and (c.kind == 'vmem' and getattr(c, 'lds', False) or c.base_is('addtid')): n = max(n, 1)
    if p.kind == 'vmem' and getattr(p, 'wide_store', False):
        if c.kind == 'valu' and p.sdata & c.w: n = max(n, 2)
        elif c.kind != 'none' and p.sdata & c.w: n = max(n, 1)
    return n
Ins.base_is = lambda self, s: s in self.op

class Asm:
    def __init__(self):
        self.lines = []
        self.uid = 0
    def __call__(self, text):
        for l in text.split('\n'):
            l = l.strip()
            if l: self.lines.append(l)
    def label(self, name): self.lines.append(name + ':')
    def newlabel(self, p='L'):
        self.uid += 1
        return f"{p}_{self.uid}"
    def finalize(self, fix=True):
        ins = [Ins(l) for l in self.lines]
        out = []
        def window(seq, end):
            d = 0; i = end - 1
            while i >= 0 and d < 22:
                x = seq[i]
                if x.kind != 'none':
                    yield x, d
                    if x.op in ('s_branch', 's_endpgm'): return
                    d += x.states()
                i -= 1
        nfix = 0
        for c in ins:
            if c.kind != 'none':
                req = 0
                for p, d in window(out, len(out)):
                    n = need(p, c)
                    if n > d: req = max(req, n - d)
                if req:
                    if not fix: raise RuntimeError("hazard before: " + c.text)
                    while req > 0:
                        k = min(req, 16); out.append(Ins(f"s_nop {k-1}")); req -= k
                    nfix += 1
            out.append(c)
        lab = {x.text.strip()[:-1]: i for i, x in enumerate(out) if x.is_label}
        for i, x in enumerate(out):
            if x.kind == 'salu' and (x.op.startswith('s_cbranch') or x.op == 's_branch') and x.ops and x.ops[0] in lab:
                t = lab[x.ops[0]]
                prods = list(window(out, i))
                d2 = 1
                j = t
                while j < len(out) and d2 < 22:
                    c = out[j]
                    if c.kind != 'none':
                        for p, d in prods:
                            n = need(p, c)
                            if n > d + d2:
                                raise RuntimeError(f"hazard across branch '{x.text}': {p.text} -> {c.text} needs {n}, has {d + d2}")
                        if c.op in ('s_branch', 's_endpgm'): break
                        d2 += c.states()
                    j += 1
        res = []
        for x in out:
            res.append(x.text if (x.is_label or x.is_dir) else "  " + x.text)
        return "\n".join(res) + "\n"
```

```python
import sys
from asmlib import Asm
from phases import *

WS_Q   = 0x0
WS_PML = 0x20000
WS_ACT = 0x30000
WS_H   = 0x31000
WS_AP  = 0x40000
WS_PO  = 0x100000
WS_SZ  = 0x200000

def prologue(A, nwg, end):
    A(f"s_cmp_ge_u32 s2, {nwg}")
    A(f"s_cbranch_scc1 {end}")
    A("v_lshrrev_b32 v1, 6, v0")
    A("v_readfirstlane_b32 s3, v1")
    A("v_and_b32 v2, 63, v0")

def k1(A):
    end = "K1_end"
    prologue(A, 256, end)
    A("s_load_dwordx2 s[20:21], s[0:1], 0")
    A("s_load_dwordx2 s[22:23], s[0:1], 24")
    A("s_load_dwordx2 s[24:25], s[0:1], 88")
    A("s_and_b32 s26, s2, 7")
    A("s_lshr_b32 s27, s2, 3")
    A("s_lshl_b32 s28, s26, 9"); A("s_lshl_b32 s29, s27, 4"); A("s_add_u32 s28, s28, s29")
    for i in range(1, 8): A(f"s_mov_b32 s{39+i}, {i*8192}")
    A("v_and_b32 v3, 7, v2")
    A("v_lshrrev_b32 v4, 3, v2")
    A("s_waitcnt lgkmcnt(0)")
    srd(A, 4, 22, 512*8192); srd(A, 8, 20, 1024); srd(A, 12, 24, WS_SZ)
    A("s_lshl_b32 s30, s3, 19"); A("s_lshl_b32 s31, s28, 1"); A("s_add_u32 s30, s30, s31")
    A("v_lshlrev_b32 v5, 16, v4"); A("v_lshl_add_u32 v5, v3, 2, v5"); A("v_add_u32 v5, s30, v5")
    A("v_lshlrev_b32 v6, 4, v2")
    A("buffer_load_dwordx4 v[8:11], v6, s[8:11], 0 offen")
    A("s_lshl_b32 s31, s3, 7")
    A("v_lshlrev_b32 v7, 4, v4"); A("v_add_u32 v7, s31, v7")
    A("buffer_load_dwordx4 v[12:15], v7, s[8:11], 0 offen")
    for i in range(8):
        so = "0" if i == 0 else f"s{39+i}"
        A(f"buffer_load_dword v{16+i}, v5, s[4:7], {so} offen")
    A("s_waitcnt vmcnt(9)")
    for i in range(4): unpack(A, 24+2*i, 25+2*i, 8+i)
    ln_stats(A, 24, 8, 40, 36, 37, 38)
    A("s_waitcnt vmcnt(8)")
    for i in range(4): unpack(A, 24+2*i, 25+2*i, 12+i)
    ln_apply(A, 24, 8, 36, 37, 38, 40)
    A("s_waitcnt vmcnt(0)")
    for i in range(8):
        unpack(A, 40, 41, 16+i)
        if i == 0:
            A("v_mul_f32 v44, v24, v40"); A("v_mul_f32 v45, v24, v41")
        else:
            A(f"v_fmac_f32 v44, v{24+i}, v40"); A(f"v_fmac_f32 v45, v{24+i}, v41")
    allred_multi(A, 'add', [44, 45], ['r8', 'p16', 'p32'], [46, 47])
    A("s_lshl_b32 s31, s3, 6")
    A("v_lshlrev_b32 v7, 3, v2"); A("v_add_u32 v7, s31, v7")
    A("v_cmp_gt_u32 vcc, 8, v2")
    A("s_and_saveexec_b64 s[32:33], vcc")
    A("ds_write_b64 v7, v[44:45]")
    A("s_mov_b64 exec, s[32:33]")
    A("s_waitcnt lgkmcnt(0)")
    A("s_barrier")
    A("s_cmp_lg_u32 s3, 0"); A(f"s_cbranch_scc1 {end}")
    A("v_cmp_gt_u32 vcc, 16, v2")
    A("s_and_saveexec_b64 s[32:33], vcc")
    A("v_lshlrev_b32 v7, 2, v2")
    for w in range(8): A(f"ds_read_b32 v{16+w}, v7 offset:{64*w}")
    A("s_waitcnt lgkmcnt(0)")
    for w in range(1, 8): A(f"v_add_f32 v16, v16, v{16+w}")
    A("v_cvt_pk_bf16_f32 v16, v16, v16")
    A("v_add_u32 v7, s28, v2"); A("v_lshlrev_b32 v7, 1, v7")
    A(f"buffer_store_short v16, v7, s[12:15], 0 offen offset:{WS_Q}")
    A.label(end); A("s_endpgm")

class AttRegs:
    Ko = 10; Vo = 14; Ka = 16; Va = 20; Q = 28; K = 44; V = 60; S = 76; P = 80
    m = 82; mm = 83; l = 84; nf = 85; T = 86; acc = 100
    sK = 4; sV = 8; sW = 12
    sOffK = 40; sOffV = 41; sM0 = 42
    sCnt = 46
R = AttRegs

def att_setup_addr(A):
    A("v_lshrrev_b32 v3, 4, v2")
    A("v_and_b32 v4, 15, v2")
    A("v_xor_b32 v5, v4, v3"); A("v_lshlrev_b32 v5, 4, v5"); A(f"v_lshl_add_u32 v{R.Ko}, v3, 8, v5")
    for n in range(1, 4): A(f"v_xor_b32 v{R.Ko+n}, {n<<6}, v{R.Ko}")
    A("v_lshlrev_b32 v5, 1, v3"); A("v_xor_b32 v5, v4, v5"); A("v_lshlrev_b32 v5, 4, v5"); A(f"v_lshl_add_u32 v{R.Vo}, v3, 8, v5")
    A(f"v_xor_b32 v{R.Vo+1}, 0x80, v{R.Vo}")
    A("s_lshl_b32 s30, s3, 14")
    A("v_xor_b32 v5, v4, v3"); A("v_lshlrev_b32 v5, 4, v5"); A(f"v_lshl_add_u32 v5, v4, 8, v5"); A(f"v_add_u32 v{R.Ka}, s30, v5")
    for j in range(1, 4): A(f"v_xor_b32 v{R.Ka+j}, {j<<6}, v{R.Ka}")
    A("v_lshrrev_b32 v5, 2, v2")
    A("v_and_b32 v6, 7, v5"); A("v_lshlrev_b32 v6, 5, v6")
    A("v_lshl_add_u32 v6, v5, 8, v6")
    A("v_and_b32 v7, 3, v2"); A("v_lshl_add_u32 v6, v7, 3, v6")
    A(f"v_add_u32 v{R.Va}, s30, v6")
    for t in range(1, 8): A(f"v_xor_b32 v{R.Va+t}, {t<<5}, v{R.Va}")
    for i in range(4): A(f"s_add_u32 s{R.sM0+i}, s30, {i*4096}")
    A("v_bfe_u32 v5, v2, 2, 1"); A("v_cvt_f32_u32 v5, v5"); A(f"v_sub_f32 v{R.nf}, 0, v5")

def att_issue(A, which, sl):
    srdn = R.sK if which == 'K' else R.sV
    so = R.sOffK if which == 'K' else R.sOffV
    A(f"s_mov_b32 m0, s{R.sM0 + 2*sl + (0 if which == 'K' else 1)}")
    for n in range(4):
        vo = R.Ko + n if which == 'K' else R.Vo + (n & 1)
        A(f"buffer_load_dwordx4 v{vo}, s[{srdn}:{srdn+3}], s{so} offen offset:{n*1024} nt lds")
    A(f"s_add_u32 s{so}, s{so}, 0x8000")

def att_unit(A, sl, wK, wV, issue):
    T = R.T; S = R.S
    A(f"s_waitcnt vmcnt({wK})")
    for j in range(4): A(f"ds_read_b128 v[{R.K+4*j}:{R.K+4*j+3}], v{R.Ka+j} offset:{sl*8192}")
    A("s_waitcnt lgkmcnt(0)")
    for j in range(4):
        c = "0" if j == 0 else f"v[{S}:{S+3}]"
        A(f"v_mfma_f32_16x16x32_bf16 v[{S}:{S+3}], v[{R.K+4*j}:{R.K+4*j+3}], v[{R.Q+4*j}:{R.Q+4*j+3}], {c}")
    if issue: att_issue(A, 'K', sl)
    A(f"v_cvt_pk_bf16_f32 v{T}, v{S}, v{S+1}"); A(f"v_cvt_pk_bf16_f32 v{T+1}, v{S+2}, v{S+3}")
    unpack(A, S, S+1, T); unpack(A, S+2, S+3, T+1)
    for i in range(4): A(f"v_mul_f32 v{S+i}, {SCALE}, v{S+i}")
    A(f"v_cvt_pk_bf16_f32 v{T}, v{S}, v{S+1}"); A(f"v_cvt_pk_bf16_f32 v{T+1}, v{S+2}, v{S+3}")
    unpack(A, S, S+1, T); unpack(A, S+2, S+3, T+1)
    A(f"v_max3_f32 v{T+2}, v{S}, v{S+1}, v{S+2}")
    A(f"v_max3_f32 v{T+2}, v{T+2}, v{S+3}, v{R.m}")
    allred(A, 'max', T+2, ['p16', 'p32'], T+3)
    A(f"v_mul_f32 v{T+3}, {LOG2E}, v{T+2}")
    A(f"v_cmp_gt_f32 vcc, v{T+2}, v{R.m}")
    for i in range(4): A(f"v_fma_f32 v{S+i}, v{S+i}, s47, -v{T+3}")
    for i in range(4): A(f"v_exp_f32 v{S+i}, v{S+i}")
    skip = A.newlabel("noresc")
    A(f"s_cbranch_vccz {skip}")
    A(f"v_sub_f32 v{T+4}, v{R.mm}, v{T+3}")
    A(f"v_exp_f32 v{T+4}, v{T+4}")
    A(f"v_mov_b32 v{R.m}, v{T+2}"); A(f"v_mov_b32 v{R.mm}, v{T+3}")
    A(f"v_mul_f32 v{R.l}, v{R.l}, v{T+4}")
    for r in range(32): A(f"v_mul_f32 v{R.acc+r}, v{R.acc+r}, v{T+4}")
    A.label(skip)
    A(f"v_add_f32 v{T+5}, v{S}, v{S+1}"); A(f"v_add_f32 v{T+6}, v{S+2}, v{S+3}")
    A(f"v_cvt_pk_bf16_f32 v{T}, v{S}, v{S+1}"); A(f"v_cvt_pk_bf16_f32 v{T+1}, v{S+2}, v{S+3}")
    A(f"v_add_f32 v{T+5}, v{T+5}, v{T+6}")
    unpack(A, T+7, T+8, T); unpack(A, T+9, T+10, T+1)
    A(f"v_add_f32 v{R.l}, v{R.l}, v{T+5}")
    for i in range(4): A(f"v_fma_f32 v{S+i}, v{T+7+i}, v{R.nf}, v{S+i}")
    A(f"v_cvt_pk_bf16_f32 v{R.P}, v{S}, v{S+1}"); A(f"v_cvt_pk_bf16_f32 v{R.P+1}, v{S+2}, v{S+3}")
    A(f"s_waitcnt vmcnt({wV})")
    for t in range(8): A(f"ds_read_b64_tr_b16 v[{R.V+2*t}:{R.V+2*t+1}], v{R.Va+t} offset:{sl*8192+4096}")
    A("s_waitcnt lgkmcnt(0)")
    for t in range(8):
        a = R.acc + 4*t
        A(f"v_mfma_f32_16x16x16_bf16 v[{a}:{a+3}], v[{R.V+2*t}:{R.V+2*t+1}], v[{R.P}:{R.P+1}], v[{a}:{a+3}]")
    if issue: att_issue(A, 'V', sl)

def att_init_state(A):
    A(f"v_mov_b32 v{R.m}, 0xff800000"); A(f"v_mov_b32 v{R.mm}, 0xff800000"); A(f"v_mov_b32 v{R.l}, 0")
    for r in range(32): A(f"v_mov_b32 v{R.acc+r}, 0")
    A(f"s_mov_b32 s47, {LOG2E}")

def att_loop(A):
    A(f"s_mov_b32 s{R.sCnt}, 7")
    lp = A.newlabel("attloop")
    A.label(lp)
    att_unit(A, 0, 12, 12, True)
    att_unit(A, 1, 12, 12, True)
    A(f"s_sub_u32 s{R.sCnt}, s{R.sCnt}, 1"); A(f"s_cmp_lg_u32 s{R.sCnt}, 0"); A(f"s_cbranch_scc1 {lp}")
    att_unit(A, 0, 12, 8, False)
    att_unit(A, 1, 4, 0, False)

def att_wave_merge(A):
    T = R.T
    allred(A, 'add', R.l, ['p16', 'p32'], T)
    for r in range(32): A(f"v_add_f32_dpp v{R.acc+r}, v{R.acc+r}, v{R.acc+r} row_ror:4 {DPPM}")
    A("v_and_b32 v4, 15, v2"); A("v_lshrrev_b32 v3, 4, v2")
    A("v_lshlrev_b32 v4, 9, v4"); A("v_lshl_add_u32 v4, v3, 4, v4"); A(f"v_add_u32 v4, s{R.sM0}, v4")
    A("v_and_b32 v5, 15, v2"); A("v_lshlrev_b32 v5, 3, v5"); A(f"v_add_u32 v5, s{R.sM0}, v5")
    A(f"v_mov_b32 v{R.m+1}, v{R.l}")
    A("s_mov_b32 exec_lo, 0x000f000f"); A("s_mov_b32 exec_hi, 0x000f000f")
    for t in range(8): A(f"ds_write_b128 v4, v[{R.acc+4*t}:{R.acc+4*t+3}] offset:{64*t}")
    A("s_mov_b32 exec_lo, 0xf"); A("s_mov_b32 exec_hi, 0")
    A(f"ds_write_b64 v5, v[{R.m}:{R.m+1}] offset:2048")
    A("s_mov_b64 exec, -1")
    A("s_waitcnt lgkmcnt(0)")
    A("s_barrier")

def att_wg_combine(A):
    A("v_lshrrev_b32 v3, 7, v0")
    A("v_and_b32 v4, 127, v0")
    A("v_lshlrev_b32 v5, 3, v3")
    A("v_lshlrev_b32 v6, 9, v3"); A("v_lshl_add_u32 v6, v4, 2, v6")
    A("v_add_u32 v7, 0x10000, v5"); A("v_add_u32 v8, 0x10000, v6")
    for w in range(8):
        a = 5 if w < 4 else 7
        A(f"ds_read_b64 v[{24+2*w}:{25+2*w}], v{a} offset:{(w&3)*16384+2048}")
    for w in range(8):
        a = 6 if w < 4 else 8
        A(f"ds_read_b32 v{40+w}, v{a} offset:{(w&3)*16384}")
    A("s_waitcnt lgkmcnt(8)")
    A("v_max3_f32 v22, v24, v26, v28"); A("v_max3_f32 v22, v22, v30, v32"); A("v_max3_f32 v22, v22, v34, v36"); A("v_max_f32 v22, v22, v38")
    for w in range(8): A(f"v_sub_f32 v{24+2*w}, v{24+2*w}, v22")
    for w in range(8): A(f"v_mul_f32 v{24+2*w}, {LOG2E}, v{24+2*w}")
    for w in range(8): A(f"v_exp_f32 v{24+2*w}, v{24+2*w}")
    A("v_mul_f32 v23, v24, v25")
    for w in range(1, 8): A(f"v_fmac_f32 v23, v{24+2*w}, v{25+2*w}")
    A("s_waitcnt lgkmcnt(0)")
    A("v_mul_f32 v20, v24, v40")
    for w in range(1, 8): A(f"v_fmac_f32 v20, v{24+2*w}, v{40+w}")

def k2(A):
    end = "K2_end"
    prologue(A, 256, end)
    A("s_load_dwordx4 s[20:23], s[0:1], 8")
    A("s_load_dwordx2 s[24:25], s[0:1], 88")
    A("s_and_b32 s26, s2, 7")
    A("s_lshr_b32 s27, s2, 3")
    att_setup_addr(A)
    A("s_lshl_b32 s31, s26, 24"); A("s_lshl_b32 s32, s27, 19"); A("s_add_u32 s31, s31, s32")
    A("s_lshl_b32 s32, s3, 12"); A(f"s_add_u32 s{R.sOffK}, s31, s32"); A(f"s_mov_b32 s{R.sOffV}, s{R.sOffK}")
    A("s_waitcnt lgkmcnt(0)")
    srd(A, R.sK, 20, 0x8000000); srd(A, R.sV, 22, 0x8000000); srd(A, R.sW, 24, WS_SZ)
    A("v_and_b32 v5, 3, v2"); A("v_lshlrev_b32 v5, 8, v5")
    A("v_lshrrev_b32 v6, 4, v2"); A("v_lshl_add_u32 v5, v6, 4, v5")
    A("s_lshl_b32 s31, s26, 10"); A("v_add_u32 v5, s31, v5")
    for j in range(4): A(f"buffer_load_dwordx4 v[{R.Q+4*j}:{R.Q+4*j+3}], v5, s[{R.sW}:{R.sW+3}], 0 offen offset:{WS_Q + 64*j}")
    for sl in range(2):
        att_issue(A, 'K', sl); att_issue(A, 'V', sl)
    att_init_state(A)
    att_loop(A)
    att_wave_merge(A)
    att_wg_combine(A)
    A("s_lshl_b32 s31, s26, 7"); A("s_add_u32 s31, s31, s27")
    A("v_lshlrev_b32 v9, 5, v3"); A("v_add_u32 v9, s31, v9")
    A("v_lshlrev_b32 v10, 9, v9"); A("v_lshl_add_u32 v10, v4, 2, v10")
    A(f"s_mov_b32 s32, {WS_PO}")
    A(f"buffer_store_dword v20, v10, s[{R.sW}:{R.sW+3}], s32 offen")
    A("v_lshlrev_b32 v11, 3, v9")
    A("v_cmp_eq_u32 vcc, 0, v4")
    A("s_and_saveexec_b64 s[34:35], vcc")
    A(f"s_cbranch_execz {end}")
    A(f"s_mov_b32 s32, {WS_PML}")
    A(f"buffer_store_dwordx2 v[22:23], v11, s[{R.sW}:{R.sW+3}], s32 offen")
    A.label(end); A("s_endpgm")

def k3(A):
    end = "K3_end"
    prologue(A, 256, end)
    A("s_load_dwordx2 s[20:21], s[0:1], 32")
    A("s_load_dwordx2 s[24:25], s[0:1], 88")
    A("s_and_b32 s26, s2, 7"); A("s_lshl_b32 s26, s26, 2")
    A("s_bfe_u32 s27, s2, 0x20003"); A("s_add_u32 s26, s26, s27")
    A("s_lshr_b32 s27, s2, 5")
    A("v_and_b32 v3, 3, v2")
    A("v_lshrrev_b32 v4, 2, v2")
    A("s_waitcnt lgkmcnt(0)")
    srd(A, 4, 20, 4096*1024); srd(A, 12, 24, WS_SZ)
    A("s_lshl_b32 s28, s26, 17"); A("s_lshl_b32 s29, s3, 14"); A("s_add_u32 s28, s28, s29")
    A("s_lshl_b32 s29, s27, 7"); A("s_add_u32 s28, s28, s29")
    A("v_lshlrev_b32 v5, 12, v3"); A("v_lshl_add_u32 v5, v4, 3, v5"); A("v_add_u32 v5, s28, v5")
    for i in range(4): A(f"buffer_load_dwordx2 v[{40+2*i}:{41+2*i}], v5, s[4:7], 0 offen offset:{1024*i}")
    A("s_lshl_b32 s28, s26, 14"); A("s_lshl_b32 s29, s3, 6"); A("s_add_u32 s28, s28, s29"); A(f"s_add_u32 s28, s28, {WS_PO}")
    A("v_lshlrev_b32 v6, 9, v4"); A("v_lshl_add_u32 v6, v3, 4, v6")
    A("s_add_u32 s29, s28, 8192")
    A("s_lshl_b32 s30, s26, 8"); A(f"s_add_u32 s30, s30, {WS_PML}")
    A("v_lshlrev_b32 v7, 3, v4")
    A("buffer_load_dwordx2 v[16:17], v7, s[12:15], s30 offen")
    A("buffer_load_dwordx2 v[18:19], v7, s[12:15], s30 offen offset:128")
    A("buffer_load_dwordx4 v[8:11], v6, s[12:15], s28 offen")
    A("buffer_load_dwordx4 v[12:15], v6, s[12:15], s29 offen")
    A("s_waitcnt vmcnt(2)")
    A("v_max_f32 v20, v16, v18")
    allred(A, 'max', 20, ['r4', 'r8', 'p16', 'p32'], 21)
    A("v_sub_f32 v16, v16, v20"); A("v_sub_f32 v18, v18, v20")
    A(f"v_mul_f32 v16, {LOG2E}, v16"); A(f"v_mul_f32 v18, {LOG2E}, v18")
    A("v_exp_f32 v16, v16"); A("v_exp_f32 v18, v18")
    A("v_mul_f32 v20, v16, v17"); A("v_fmac_f32 v20, v18, v19")
    A("s_waitcnt vmcnt(0)")
    for i in range(4):
        A(f"v_mul_f32 v{8+i}, v{8+i}, v16"); A(f"v_fmac_f32 v{8+i}, v{12+i}, v18")
    allred_multi(A, 'add', [8, 9, 10, 11, 20], ['r4', 'r8', 'p16', 'p32'], [24, 25, 26, 27, 28])
    A("v_rcp_f32 v21, v20")
    for i in range(4): A(f"v_mul_f32 v{8+i}, v{8+i}, v21")
    rnd_bf16_pair(A, 8, 9, 24); rnd_bf16_pair(A, 10, 11, 24)
    for i in range(4):
        unpack(A, 24, 25, 40+2*i); unpack(A, 26, 27, 41+2*i)
        for k in range(4):
            if i == 0: A(f"v_mul_f32 v{32+k}, v{8+i}, v{24+k}")
            else: A(f"v_fmac_f32 v{32+k}, v{8+i}, v{24+k}")
    allred_multi(A, 'add', [32, 33, 34, 35], ['q1', 'q2'], [])
    A("s_lshl_b32 s31, s3, 8")
    A("v_lshlrev_b32 v7, 4, v4"); A("v_add_u32 v7, s31, v7")
    A("v_cmp_eq_u32 vcc, 0, v3")
    A("s_and_saveexec_b64 s[32:33], vcc")
    A("ds_write_b128 v7, v[32:35]")
    A("s_mov_b64 exec, s[32:33]")
    A("s_waitcnt lgkmcnt(0)"); A("s_barrier")
    A("s_cmp_lg_u32 s3, 0"); A(f"s_cbranch_scc1 {end}")
    A("v_lshlrev_b32 v7, 2, v2")
    for w in range(8): A(f"ds_read_b32 v{16+w}, v7 offset:{256*w}")
    A("s_waitcnt lgkmcnt(0)")
    for w in range(1, 8): A(f"v_add_f32 v16, v16, v{16+w}")
    A("s_lshl_b32 s28, s26, 11"); A("s_lshl_b32 s29, s27, 8"); A("s_add_u32 s28, s28, s29"); A(f"s_add_u32 s28, s28, {WS_AP}")
    A("buffer_store_dword v16, v7, s[12:15], s28 offen")
    A.label(end); A("s_endpgm")

def gelu_mul(A, g, u, t):
    A(f"v_mul_f32 v{t}, v{g}, v{g}")
    A(f"v_mov_b32 v{t+1}, 0x40135761")
    A(f"v_fmac_f32 v{t+1}, 0x3dd2d3e8, v{t}")
    A(f"v_mul_f32 v{t}, v{g}, v{t+1}")
    A(f"v_exp_f32 v{t}, -v{t}")
    A(f"v_add_f32 v{t}, 1.0, v{t}")
    A(f"v_rcp_f32 v{t}, v{t}")
    A(f"v_mul_f32 v{g}, v{g}, v{t}")
    rnd_bf16(A, g)
    A(f"v_mul_f32 v{g}, v{g}, v{u}")
    A(f"v_cvt_pk_bf16_f32 v{g}, v{g}, v{g}")

def k4(A):
    end = "K4_end"
    prologue(A, 224, end)
    A("s_load_dwordx2 s[20:21], s[0:1], 0")
    A("s_load_dwordx4 s[36:39], s[0:1], 48")
    A("s_load_dwordx2 s[24:25], s[0:1], 88")
    A("s_and_b32 s26, s2, 7"); A("s_mul_i32 s26, s26, 28"); A("s_lshr_b32 s27, s2, 3"); A("s_add_u32 s26, s26, s27")
    A("v_and_b32 v3, 3, v2")
    A("v_lshrrev_b32 v4, 2, v2")
    A("s_waitcnt lgkmcnt(0)")
    srd(A, 4, 36, 512*3584); srd(A, 8, 38, 512*3584); srd(A, 12, 24, WS_SZ); srd(A, 16, 20, 1024)
    A("s_mul_i32 s28, s3, " + str(64*3584)); A("s_lshl_b32 s29, s26, 4"); A("s_add_u32 s28, s28, s29")
    A("v_mul_u32_u24 v5, " + str(4*3584) + ", v4"); A("v_lshl_add_u32 v5, v3, 2, v5"); A("v_add_u32 v5, s28, v5")
    for i in range(4):
        A(f"s_mov_b32 s{40+i}, {i*3584}")
    for i in range(4):
        A(f"buffer_load_dword v{48+i}, v5, s[4:7], s{40+i} offen")
        A(f"buffer_load_dword v{52+i}, v5, s[8:11], s{40+i} offen")
    A("v_lshlrev_b32 v6, 1, v0")
    A("buffer_load_ushort v56, v6, s[16:19], 0 offen")
    A("s_lshl_b32 s28, s3, 13"); A(f"s_add_u32 s28, s28, {WS_AP}")
    A("v_lshlrev_b32 v7, 5, v2")
    for hh in range(4):
        A(f"s_add_u32 s{44+hh}, s28, {hh*2048}")
    for hh in range(4):
        A(f"buffer_load_dwordx4 v[{8+8*hh}:{11+8*hh}], v7, s[12:15], s{44+hh} offen")
        A(f"buffer_load_dwordx4 v[{12+8*hh}:{15+8*hh}], v7, s[12:15], s{44+hh} offen offset:16")
    A("s_waitcnt vmcnt(0)")
    for k in range(8):
        A(f"v_add_f32 v{8+k}, v{8+k}, v{16+k}"); A(f"v_add_f32 v{24+k}, v{24+k}, v{32+k}")
    for k in range(8): A(f"v_add_f32 v{8+k}, v{8+k}, v{24+k}")
    A("s_lshl_b32 s28, s3, 11")
    A("v_add_u32 v7, s28, v7")
    A("ds_write_b128 v7, v[8:11]"); A("ds_write_b128 v7, v[12:15] offset:16")
    A("s_waitcnt lgkmcnt(0)"); A("s_barrier")
    A("v_lshlrev_b32 v7, 2, v0")
    for w in range(8): A(f"ds_read_b32 v{8+w}, v7 offset:{2048*w}")
    A("s_waitcnt lgkmcnt(0)")
    for w in range(1, 8): A(f"v_add_f32 v8, v8, v{8+w}")
    rnd_bf16(A, 8)
    A("v_lshlrev_b32 v56, 16, v56")
    A("v_add_f32 v8, v8, v56")
    rnd_bf16(A, 8)
    A("ds_write_b32 v7, v8 offset:16384")
    sk = A.newlabel("noh")
    A("s_cmp_lg_u32 s2, 0"); A(f"s_cbranch_scc1 {sk}")
    A(f"s_mov_b32 s28, {WS_H}")
    A("buffer_store_dword v8, v7, s[12:15], s28 offen")
    A.label(sk)
    A("s_waitcnt lgkmcnt(0)"); A("s_barrier")
    A("v_lshlrev_b32 v7, 5, v2")
    A("ds_read_b128 v[8:11], v7 offset:16384"); A("ds_read_b128 v[12:15], v7 offset:16400")
    A("s_lshl_b32 s28, s3, 8")
    A("v_lshlrev_b32 v6, 4, v4"); A("v_add_u32 v6, s28, v6")
    A("ds_read_b128 v[16:19], v6 offset:16384")
    A("s_waitcnt lgkmcnt(1)")
    ln_stats(A, 8, 8, 24, 20, 21, 22)
    A("s_waitcnt lgkmcnt(0)")
    ln_apply(A, 16, 4, 20, 21, 22, 24)
    for i in range(4):
        unpack(A, 24, 25, 48+i); unpack(A, 26, 27, 52+i)
        for k in range(4):
            if i == 0: A(f"v_mul_f32 v{32+k}, v{16+i}, v{24+k}")
            else: A(f"v_fmac_f32 v{32+k}, v{16+i}, v{24+k}")
    allred_multi(A, 'add', [32, 33, 34, 35], ['r4', 'r8', 'p16', 'p32'], [24, 25, 26, 27])
    A("s_lshl_b32 s28, s3, 6")
    A("v_lshlrev_b32 v7, 4, v3"); A("v_add_u32 v7, s28, v7")
    A("v_cmp_gt_u32 vcc, 4, v2")
    A("s_and_saveexec_b64 s[32:33], vcc")
    A("ds_write_b128 v7, v[32:35] offset:20480")
    A("s_mov_b64 exec, s[32:33]")
    A("s_waitcnt lgkmcnt(0)"); A("s_barrier")
    A("s_cmp_lg_u32 s3, 0"); A(f"s_cbranch_scc1 {end}")
    A("v_cmp_gt_u32 vcc, 8, v2")
    A("s_and_saveexec_b64 s[32:33], vcc")
    A("v_lshrrev_b32 v6, 1, v2"); A("v_and_b32 v7, 1, v2"); A("v_lshlrev_b32 v7, 2, v7"); A("v_lshl_add_u32 v7, v6, 4, v7")
    for w in range(8):
        A(f"ds_read_b32 v{8+w}, v7 offset:{20480+64*w}"); A(f"ds_read_b32 v{16+w}, v7 offset:{20480+64*w+8}")
    A("s_waitcnt lgkmcnt(0)")
    for w in range(1, 8):
        A(f"v_add_f32 v8, v8, v{8+w}"); A(f"v_add_f32 v16, v16, v{16+w}")
    rnd_bf16_pair(A, 8, 16, 24)
    gelu_mul(A, 8, 16, 24)
    A("s_lshl_b32 s28, s26, 4"); A(f"s_add_u32 s28, s28, {WS_ACT}")
    A("v_lshlrev_b32 v7, 1, v2")
    A("buffer_store_short v8, v7, s[12:15], s28 offen")
    A.label(end); A("s_endpgm")

def k5(A):
    end = "K5_end"
    prologue(A, 64, end)
    A("s_load_dwordx4 s[36:39], s[0:1], 64")
    A("s_load_dwordx2 s[24:25], s[0:1], 88")
    A("s_and_b32 s26, s2, 7"); A("s_lshl_b32 s26, s26, 3"); A("s_lshr_b32 s27, s2, 3"); A("s_add_u32 s26, s26, s27")
    A("v_and_b32 v3, 3, v2"); A("v_lshrrev_b32 v4, 2, v2")
    A("s_waitcnt lgkmcnt(0)")
    srd(A, 4, 36, 1792*1024); srd(A, 8, 38, 1024); srd(A, 12, 24, WS_SZ)
    A("s_mul_i32 s28, s3, " + str(224*1024)); A("s_lshl_b32 s29, s26, 4"); A("s_add_u32 s28, s28, s29")
    A("v_lshlrev_b32 v5, 11, v4"); A("v_lshl_add_u32 v5, v3, 2, v5"); A("v_add_u32 v5, s28, v5")
    for i in range(7): A(f"s_mov_b32 s{40+i}, {i*32768}")
    for i in range(7):
        A(f"buffer_load_dword v{16+2*i}, v5, s[4:7], s{40+i} offen")
        A(f"buffer_load_dword v{17+2*i}, v5, s[4:7], s{40+i} offen offset:1024")
    A("s_mul_i32 s28, s3, 448"); A(f"s_add_u32 s28, s28, {WS_ACT}")
    A("v_lshlrev_b32 v6, 2, v4")
    for i in range(7): A(f"buffer_load_dword v{8+i}, v6, s[12:15], s28 offen offset:{64*i}")
    A("s_lshl_b32 s29, s26, 5"); A(f"s_add_u32 s29, s29, {WS_H}")
    A("v_and_b32 v7, 7, v2"); A("v_lshlrev_b32 v7, 2, v7")
    A("buffer_load_dword v40, v7, s[12:15], s29 offen")
    A("s_waitcnt vmcnt(0)")
    for i in range(7):
        unpack(A, 32, 33, 8+i)
        unpack(A, 34, 35, 16+2*i); unpack(A, 36, 37, 17+2*i)
        if i == 0:
            A("v_mul_f32 v38, v32, v34"); A("v_mul_f32 v39, v32, v35")
        else:
            A("v_fmac_f32 v38, v32, v34"); A("v_fmac_f32 v39, v32, v35")
        A("v_fmac_f32 v38, v33, v36"); A("v_fmac_f32 v39, v33, v37")
    allred_multi(A, 'add', [38, 39], ['r4', 'r8', 'p16', 'p32'], [32, 33])
    A("s_lshl_b32 s28, s3, 5")
    A("v_lshlrev_b32 v7, 3, v3"); A("v_add_u32 v7, s28, v7")
    A("v_cmp_gt_u32 vcc, 4, v2")
    A("s_and_saveexec_b64 s[32:33], vcc")
    A("ds_write_b64 v7, v[38:39]")
    A("s_mov_b64 exec, s[32:33]")
    A("s_waitcnt lgkmcnt(0)"); A("s_barrier")
    A("s_cmp_lg_u32 s3, 0"); A(f"s_cbranch_scc1 {end}")
    A("v_cmp_gt_u32 vcc, 8, v2")
    A("s_and_saveexec_b64 s[32:33], vcc")
    A("v_lshlrev_b32 v7, 2, v2")
    for w in range(8): A(f"ds_read_b32 v{8+w}, v7 offset:{32*w}")
    A("s_waitcnt lgkmcnt(0)")
    for w in range(1, 8): A(f"v_add_f32 v8, v8, v{8+w}")
    rnd_bf16(A, 8)
    A("v_add_f32 v8, v8, v40")
    A("v_cvt_pk_bf16_f32 v8, v8, v8")
    A("s_lshl_b32 s28, s26, 4")
    A("v_lshlrev_b32 v7, 1, v2")
    A("buffer_store_short v8, v7, s[8:11], s28 offen")
    A.label(end); A("s_endpgm")

def gen():
    ks = [("k1_kernel", k1, 256, 1024, 64), ("k2_kernel", k2, 256, 131072, 136), ("k3_kernel", k3, 256, 4096, 64),
          ("k4_kernel", k4, 224, 24576, 64), ("k5_kernel", k5, 64, 1024, 64)]
    out = "; v1 launch list\n"
    for n, f, g, lds, vg in ks: out += f"; @launch kernel={n} grid=({g},1,1) block=(512,1,1) lds={lds}\n"
    out += '.amdgcn_target "amdgcn-amd-amdhsa--gfx950"\n.text\n'
    for n, f, g, lds, vg in ks:
        A = Asm(); A.uid = int(n[1]) * 1000
        f(A)
        out += khead(n) + A.finalize()
    out += '.section .rodata,"a"\n.p2align 6\n'
    for n, f, g, lds, vg in ks: out += ".p2align 6\n" + kdesc(n, vg)
    return out

if __name__ == "__main__":
    open(sys.argv[1] if len(sys.argv) > 1 else "v1.s", "w").write(gen())
```

```python
import sys
from asmlib import Asm
from phases import *
from gen_v1 import att_unit as _att_unit_v1, gelu_mul

KNAME = "sequential_preLN__gqa_block_cached__geglu_ffn__decode_kernel"
WS_Q   = 0x0
WS_ML  = 0x20000
WS_ACT = 0x30000
WS_AP  = 0x40000
WS_PO  = 0x100000
WS_TS  = 0x200000
WS_SZ  = 0x400000
L_QP = 131072; L_QL = L_QP + 512; L_WP = L_QL + 1024; L_FS = L_WP + 1024; L_HB = L_FS + 128
L_FP = L_HB + 2048; L_DP = L_FP + 512; L_END = L_DP + 256
LDS = 139264
OOR = 0x7ffffff0
SPIN = 200000

class R:
    Ko = 10; Vo = 14; Ka = 16; Va = 20; Q = 28; K = 44; V = 60; S = 76; P = 80
    m = 82; mm = 83; l = 84; nf = 85; T = 86; acc = 100
    WO = 132; GU = 140; DW = 148; XU = 164; TS = 165
    sK = 4; sV = 8; sW = 12; sX = 16; sWq = 20; sWo = 24; sG = 28; sU = 32; sD = 36
    sOffK = 40; sOffV = 41; sM0 = 42; sCnt = 46; sOut = 48; sDbg = 52
    sg = 80; ss = 81; sLo = 82; sHi = 83; s4k = 84; sSpin = 85
    t0 = 86; t1 = 87; t2 = 88; t3 = 89
    sEx = 94
def S(n): return f"s[{n}:{n+3}]"

class Cfg:
    def __init__(self, **kw):
        self.n0 = 4
        self.late = 'A'
        self.ts = True
        self.bar0 = True
        self.noW = False
        self.hprio = 3
        self.__dict__.update(kw)

def stamp(A, c, k):
    if not c.ts: return
    A(f"s_memrealtime s[{R.sEx}:{R.sEx+1}]")
    A("s_waitcnt lgkmcnt(0)")
    A(f"v_writelane_b32 v{R.TS}, s{R.sEx}, {k}")

def stamp0(A, c, phase):
    if not c.ts: return
    if phase == 0: A(f"s_memrealtime s[{R.sEx}:{R.sEx+1}]")
    else: A(f"v_writelane_b32 v{R.TS}, s{R.sEx}, 0")

def flush_ts(A, c):
    if not c.ts: return
    A(f"s_mul_i32 s{R.t0}, s2, {9*128}"); A(f"s_lshl_b32 s{R.t1}, s3, 7"); A(f"s_add_u32 s{R.t0}, s{R.t0}, s{R.t1}")
    A(f"s_add_u32 s{R.t0}, s{R.t0}, {WS_TS}")
    A("s_mov_b64 exec, -1")
    A("v_and_b32 v3, 63, v0"); A(f"v_lshlrev_b32 v3, 2, v3"); A(f"v_add_u32 v3, s{R.t0}, v3")
    A("s_mov_b32 exec_lo, -1"); A("s_mov_b32 exec_hi, 0")
    A(f"buffer_store_dword v{R.TS}, v3, {S(R.sW)}, 0 offen")

def setexec(A, mask):
    A(f"s_mov_b32 exec_lo, {hex(mask & 0xffffffff)}"); A(f"s_mov_b32 exec_hi, {hex(mask >> 32)}")

def rs32(A, pairs):
    for a, b in pairs: A(f"v_permlane32_swap_b32 v{a}, v{b}")
    for a, b in pairs: A(f"v_add_f32 v{a}, v{a}, v{b}")
def rs16(A, pairs):
    for a, b in pairs: A(f"v_permlane16_swap_b32 v{a}, v{b}")
    for a, b in pairs: A(f"v_add_f32 v{a}, v{a}, v{b}")
def dpp_red(A, op, vs, steps):
    ins = {'add': 'v_add_f32', 'max': 'v_max_f32'}[op]
    mod = {'q1': 'quad_perm:[1,0,3,2]', 'q2': 'quad_perm:[2,3,0,1]', 'hm': 'row_half_mirror', 'r4': 'row_ror:4', 'r8': 'row_ror:8'}
    for s in steps:
        for v in vs: A(f"{ins}_dpp v{v}, v{v}, v{v} {mod[s]} {DPPM}")

def poll(A, name, issue, check, bail, first_extra=None, sleep=1):
    lw = A.newlabel(name + "_w"); ld = A.newlabel(name + "_d")
    A(f"s_mov_b32 s{R.sSpin}, 0")
    issue()
    if first_extra: first_extra()
    A.label(lw)
    A("s_waitcnt vmcnt(0)")
    check()
    A(f"s_cbranch_vccz {ld}")
    A(f"s_add_u32 s{R.sSpin}, s{R.sSpin}, 1"); A(f"s_cmp_gt_u32 s{R.sSpin}, {SPIN}"); A(f"s_cbranch_scc1 {bail}")
    if sleep: A(f"s_sleep {sleep}")
    issue()
    A(f"s_branch {lw}")
    A.label(ld)

def chk_sent(A, regs, t):
    rs = list(regs)
    A(f"v_max3_u32 v{t}, v{rs[0]}, v{rs[1]}, v{rs[2]}"); rs = rs[3:]
    while len(rs) >= 2:
        A(f"v_max3_u32 v{t}, v{t}, v{rs[0]}, v{rs[1]}"); rs = rs[2:]
    if rs: A(f"v_max_u32 v{t}, v{t}, v{rs[0]}")
    A(f"v_cmp_eq_u32 vcc, -1, v{t}")

def att_setup_addr(A):
    t = R.t0
    A("v_lshrrev_b32 v3, 4, v2")
    A("v_and_b32 v4, 15, v2")
    A("v_xor_b32 v5, v4, v3"); A("v_lshlrev_b32 v5, 4, v5"); A(f"v_lshl_add_u32 v{R.Ko}, v3, 8, v5")
    for n in range(1, 4): A(f"v_xor_b32 v{R.Ko+n}, {n<<6}, v{R.Ko}")
    A("v_lshlrev_b32 v5, 1, v3"); A("v_xor_b32 v5, v4, v5"); A("v_lshlrev_b32 v5, 4, v5"); A(f"v_lshl_add_u32 v{R.Vo}, v3, 8, v5")
    A(f"v_xor_b32 v{R.Vo+1}, 0x80, v{R.Vo}")
    A(f"s_lshl_b32 s{t}, s3, 14")
    for i in range(4): A(f"s_add_u32 s{R.sM0+i}, s{t}, {i*4096}")

def att_setup_addr2(A):
    t = R.t0
    A("v_lshrrev_b32 v3, 4, v2"); A("v_and_b32 v4, 15, v2")
    A("v_xor_b32 v5, v4, v3"); A("v_lshlrev_b32 v5, 4, v5"); A(f"v_lshl_add_u32 v5, v4, 8, v5"); A(f"v_add_u32 v{R.Ka}, s{R.sM0}, v5")
    for j in range(1, 4): A(f"v_xor_b32 v{R.Ka+j}, {j<<6}, v{R.Ka}")
    A("v_lshrrev_b32 v5, 2, v2")
    A("v_and_b32 v6, 7, v5"); A("v_lshlrev_b32 v6, 5, v6")
    A("v_lshl_add_u32 v6, v5, 8, v6")
    A("v_and_b32 v7, 3, v2"); A("v_lshl_add_u32 v6, v7, 3, v6")
    A(f"v_add_u32 v{R.Va}, s{R.sM0}, v6")
    for k in range(1, 8): A(f"v_xor_b32 v{R.Va+k}, {k<<5}, v{R.Va}")
    A("v_bfe_u32 v5, v2, 2, 1"); A("v_cvt_f32_u32 v5, v5"); A(f"v_sub_f32 v{R.nf}, 0, v5")

def att_issue(A, which, sl):
    srdn = R.sK if which == 'K' else R.sV
    so = R.sOffK if which == 'K' else R.sOffV
    A(f"s_mov_b32 m0, s{R.sM0 + 2*sl + (0 if which == 'K' else 1)}")
    for n in range(4):
        vo = R.Ko + n if which == 'K' else R.Vo + (n & 1)
        A(f"buffer_load_dwordx4 v{vo}, {S(srdn)}, s{so} offen offset:{n*1024} nt lds")
    A(f"s_add_u32 s{so}, s{so}, 0x8000")

att_unit = _att_unit_v1

def att_init_state(A):
    A(f"v_mov_b32 v{R.m}, 0xff800000"); A(f"v_mov_b32 v{R.mm}, 0xff800000"); A(f"v_mov_b32 v{R.l}, 0")
    for r in range(32): A(f"v_mov_b32 v{R.acc+r}, 0")
    A(f"s_mov_b32 s47, {LOG2E}")

SLOTS = [('K', 0), ('V', 0), ('K', 1), ('V', 1)]

def role_scalars(A):
    A(f"s_and_b32 s{R.sg}, s2, 7"); A(f"s_lshr_b32 s{R.ss}, s2, 3")

def s_pj(A, p, j):
    A(f"s_lshl_b32 s{p}, s{R.sg}, 1"); A(f"s_and_b32 s{j}, s{R.ss}, 1"); A(f"s_add_u32 s{p}, s{p}, s{j}")
    A(f"s_lshr_b32 s{j}, s{R.ss}, 1")
def s_cb(A, cb):
    A(f"s_mul_i32 s{cb}, s{R.sg}, 28"); A(f"s_add_u32 s{cb}, s{cb}, s{R.ss}")
def s_cbd(A, cb):
    A(f"s_lshl_b32 s{cb}, s{R.sg}, 3"); A(f"s_add_u32 s{cb}, s{cb}, s{R.ss}")

def helper(A, c):
    t0, t1, t2, t3 = R.t0, R.t1, R.t2, R.t3
    bail = "H_end"
    if c.hprio: A(f"s_setprio {c.hprio}")
    A(f"s_lshl_b32 s{t0}, s{R.sg}, 15"); A(f"s_lshl_b32 s{t1}, s{R.ss}, 8"); A(f"s_add_u32 s{t0}, s{t0}, s{t1}"); A(f"s_add_u32 s{t0}, s{t0}, {WS_PO}")
    A("v_lshrrev_b32 v3, 4, v2"); A("v_and_b32 v4, 15, v2"); A("v_lshlrev_b32 v3, 13, v3"); A("v_lshl_add_u32 v3, v4, 4, v3")
    A(f"v_add_u32 v3, s{t0}, v3")
    A(f"s_lshl_b32 s{t0}, s{R.sg}, 10"); A(f"s_lshl_b32 s{t1}, s{R.ss}, 5"); A(f"s_add_u32 s{t0}, s{t0}, s{t1}")
    A(f"v_mov_b32 v4, s{t0}")
    A(f"s_add_u32 s{t1}, s{t0}, {WS_ML - 32}")
    A(f"v_mov_b32 v5, s{t1}")
    A("v_cmp_lt_u32 vcc, 1, v2"); A("v_cndmask_b32 v4, v4, v5, vcc")
    s_pj(A, t2, t3)
    A(f"s_lshl_b32 s{t2}, s{t2}, 11"); A(f"s_lshl_b32 s{t3}, s{t3}, 7"); A(f"s_add_u32 s{t2}, s{t2}, s{t3}"); A(f"s_add_u32 s{t2}, s{t2}, {WS_AP - 64}")
    A(f"v_mov_b32 v5, s{t2}")
    A("v_cmp_lt_u32 vcc, 3, v2"); A("v_cndmask_b32 v4, v4, v5, vcc")
    s_cb(A, t2)
    A(f"s_lshl_b32 s{t2}, s{t2}, 4"); A(f"s_add_u32 s{t2}, s{t2}, {WS_ACT - 192}")
    A(f"s_cmp_lt_u32 s2, 224"); A(f"s_cselect_b32 s{t2}, s{t2}, {hex(OOR - 4096)}")
    A(f"v_mov_b32 v5, s{t2}")
    A("v_cmp_lt_u32 vcc, 11, v2"); A("v_cndmask_b32 v4, v4, v5, vcc")
    A("v_lshl_add_u32 v4, v2, 4, v4")
    A(f"v_mov_b32 v5, {hex(OOR)}")
    A("v_cmp_lt_u32 vcc, 12, v2"); A("v_cndmask_b32 v4, v4, v5, vcc")
    for i in range(4): A(f"v_mov_b32 v{8+i}, -1")
    A(f"s_lshl_b32 s{t1}, s{R.sg}, 5"); A(f"s_add_u32 s{t2}, s{t1}, s{R.ss}")
    A(f"v_mov_b32 v5, s{t2}")
    A("v_and_b32 v6, 7, v2"); A("v_lshlrev_b32 v6, 2, v6"); A(f"v_add_u32 v6, s{t1}, v6")
    A("v_lshlrev_b32 v7, 2, v2")
    A("v_mov_b32 v12, 1")
    A("s_waitcnt lgkmcnt(0)")
    stamp0(A, c, 1)
    srd(A, R.sW, 78, WS_SZ); srd(A, R.sDbg, 76, 256)
    A(f"buffer_store_dwordx4 v[8:11], v4, {S(R.sW)}, 0 offen sc1")
    A(f"buffer_store_dwordx4 v[8:11], v3, {S(R.sW)}, 0 offen sc1")
    if c.bar0: A("s_barrier")
    A("s_waitcnt vmcnt(0)")
    stamp(A, c, 1)
    setexec(A, 1)
    A(f"buffer_store_byte v12, v5, {S(R.sDbg)}, 0 offen sc1")
    A("s_mov_b64 exec, -1")
    A(f"v_lshlrev_b32 v13, 3, v2"); A(f"v_add_u32 v13, {L_QP}, v13")
    A(f"v_bfe_u32 v14, v2, 2, 1"); A("v_lshlrev_b32 v14, 4, v14"); A(f"v_add_u32 v14, s{t0}, v14")
    A(f"s_lshl_b32 s{t1}, s{R.sg}, 10")
    A(f"v_lshlrev_b32 v15, 4, v2"); A(f"v_add_u32 v16, {L_QL}, v15"); A(f"v_add_u32 v15, s{t1}, v15")
    A("s_barrier")
    stamp(A, c, 2)
    A("ds_read_b64 v[20:21], v13")
    A("s_waitcnt lgkmcnt(0)")
    allred_multi(A, 'add', [20, 21], ['r8', 'p16', 'p32'], [22, 23])
    A("v_cvt_pk_bf16_f32 v20, v20, v21")
    A("v_min_u32 v20, -2, v20")
    for k in range(1, 4): A(f"v_mov_b32_dpp v{20+k}, v20 row_shl:{k} {DPPM}")
    setexec(A, 0x11)
    A(f"buffer_store_dwordx4 v[20:23], v14, {S(R.sW)}, 0 offen sc1")
    A("s_mov_b64 exec, -1")
    stamp(A, c, 3)
    def iss(): A(f"buffer_load_dword v8, v6, {S(R.sDbg)}, 0 offen sc1")
    def chk(): A("v_cmp_ne_u32 vcc, 0x01010101, v8")
    poll(A, "hf", iss, chk, bail)
    stamp(A, c, 4)
    def iss(): A(f"buffer_load_dwordx4 v[8:11], v15, {S(R.sW)}, 0 offen sc1")
    def chk(): chk_sent(A, [8, 9, 10, 11], 12)
    poll(A, "hq", iss, chk, bail)
    A("ds_write_b128 v16, v[8:11]")
    A("s_waitcnt lgkmcnt(0)")
    stamp(A, c, 5)
    A("s_barrier")
    def iss(): A(f"buffer_load_dword v8, v7, {S(R.sDbg)}, 0 offen sc1")
    def chk(): A("v_cmp_ne_u32 vcc, 0x01010101, v8")
    poll(A, "ha", iss, chk, bail, sleep=8)
    stamp(A, c, 6)
    A("s_barrier")
    A.label(bail)
    flush_ts(A, c)
    A("s_endpgm")

def tail_weights_issue(A, c):
    t0, t1, t2, t3 = R.t0, R.t1, R.t2, R.t3
    A(f"s_movk_i32 s{R.s4k}, 0x1000")
    A("v_and_b32 v3, 3, v2")
    A("v_bfe_u32 v4, v2, 5, 1"); A("v_bfe_u32 v5, v2, 4, 1")
    A("v_lshlrev_b32 v6, 2, v4"); A("v_lshl_add_u32 v6, v5, 1, v6")
    A("v_lshl_add_u32 v6, v3, 3, v6")
    A("v_bfe_u32 v7, v2, 2, 2")
    s_pj(A, t2, t3)
    A(f"s_lshl_b32 s{t2}, s{t2}, 18"); A(f"s_lshl_b32 s{t0}, s3, 15"); A(f"s_add_u32 s{t2}, s{t2}, s{t0}")
    A(f"s_lshl_b32 s{t3}, s{t3}, 6"); A(f"s_add_u32 s{t2}, s{t2}, s{t3}")
    A("v_lshlrev_b32 v6, 10, v6"); A("v_lshl_add_u32 v6, v7, 4, v6"); A(f"v_add_u32 v6, s{t2}, v6")
    if c.noW: A(f"v_mov_b32 v6, {hex(OOR - 0x200000)}")
    A(f"buffer_load_dwordx4 v[{R.WO}:{R.WO+3}], v6, {S(R.sWo)}, 0 offen")
    A(f"buffer_load_dwordx4 v[{R.WO+4}:{R.WO+7}], v6, {S(R.sWo)}, 0 offen offset:1024")
    A("v_and_b32 v3, 15, v2"); A("v_lshlrev_b32 v3, 2, v3"); A("v_lshl_add_u32 v3, v4, 1, v3"); A("v_add_u32 v3, v3, v5")
    A(f"s_lshl_b32 s{t0}, s3, 6"); A(f"v_add_u32 v3, s{t0}, v3")
    A(f"v_lshlrev_b32 v7, 1, v3")
    A(f"buffer_load_ushort v{R.XU}, v7, {S(R.sX)}, 0 offen")
    s_cb(A, t2); A(f"s_lshl_b32 s{t2}, s{t2}, 4")
    A(f"s_cmp_lt_u32 s2, 224"); A(f"s_cselect_b32 s{t2}, s{t2}, {hex(OOR - 0x200000)}")
    A("v_mul_u32_u24 v6, 3584, v3"); A(f"v_add_u32 v6, s{t2}, v6")
    if c.noW: A(f"v_mov_b32 v6, {hex(OOR - 0x200000)}")
    A(f"buffer_load_dwordx4 v[{R.GU}:{R.GU+3}], v6, {S(R.sG)}, 0 offen")
    A(f"buffer_load_dwordx4 v[{R.GU+4}:{R.GU+7}], v6, {S(R.sU)}, 0 offen")
    s_cbd(A, t2); A(f"s_lshl_b32 s{t2}, s{t2}, 4"); A(f"s_lshl_b32 s{t0}, s3, 18"); A(f"s_add_u32 s{t2}, s{t2}, s{t0}")
    A(f"s_cmp_lt_u32 s2, 64"); A(f"s_cselect_b32 s{t2}, s{t2}, {hex(OOR - 0x200000)}")
    A(f"s_cmp_lt_u32 s3, 7"); A(f"s_cselect_b32 s{t2}, s{t2}, {hex(OOR - 0x200000)}")
    A("v_lshrrev_b32 v6, 1, v2"); A("v_lshlrev_b32 v6, 13, v6"); A("v_and_b32 v7, 1, v2"); A("v_lshl_add_u32 v6, v7, 3, v6")
    A(f"v_add_u32 v6, s{t2}, v6")
    if c.noW: A(f"v_mov_b32 v6, {hex(OOR - 0x200000)}")
    for e in range(8):
        so = "0" if e < 4 else f"s{R.s4k}"
        A(f"buffer_load_dwordx2 v[{R.DW+2*e}:{R.DW+2*e+1}], v6, {S(R.sD)}, {so} offen offset:{(e&3)*1024}")
NW = 13

def tail_weights_permute(A):
    A(f"s_mov_b32 s{R.sLo}, 0x05040100"); A(f"s_mov_b32 s{R.sHi}, 0x07060302")
    T = R.T
    def inplace(a, b):
        A(f"v_perm_b32 v{T}, v{b}, v{a}, s{R.sLo}")
        A(f"v_perm_b32 v{b}, v{b}, v{a}, s{R.sHi}")
        A(f"v_mov_b32 v{a}, v{T}")
    for i in range(4): inplace(R.WO + i, R.WO + 4 + i)
    for e2 in range(4):
        b = R.DW + 4*e2
        inplace(b, b + 2); inplace(b + 1, b + 3)

MW = 10; MLW = 14; MR = 15; MLR = 3; POS = 4; MLS = 5; OG = 6; MLG = 7; WPW = 8; WPR = 9; APS = 97; APG = 98; HBW = 99

def tail_addr(A):
    t0, t1, t2, t3 = R.t0, R.t1, R.t2, R.t3
    T = R.T
    A(f"v_lshrrev_b32 v{T}, 4, v2"); A(f"v_lshlrev_b32 v{T}, 4, v{T}")
    A(f"s_lshl_b32 s{t0}, s3, 5"); A(f"v_xor_b32 v{T}, s{t0}, v{T}")
    A(f"v_and_b32 v{T+1}, 3, v2"); A(f"v_lshl_add_u32 v{T}, v{T+1}, 9, v{T}")
    A(f"v_add_u32 v{MW}, s{R.sM0}, v{T}")
    for k in range(1, 4): A(f"v_xor_b32 v{MW+k}, {k<<6}, v{MW}")
    A(f"s_add_u32 s{t0}, s{t0}, s{R.sM0}"); A(f"s_add_u32 s{t0}, s{t0}, 2048")
    A(f"v_lshlrev_b32 v{T+1}, 3, v{T+1}"); A(f"v_add_u32 v{MLW}, s{t0}, v{T+1}")
    A(f"v_and_b32 v{T}, 7, v2"); A(f"v_lshrrev_b32 v{T+1}, 3, v2")
    A(f"v_xor_b32 v{T+2}, v{T}, v{T+1}"); A(f"v_lshlrev_b32 v{T+2}, 5, v{T+2}")
    A(f"v_lshl_add_u32 v{T+2}, v{T}, 14, v{T+2}")
    A(f"s_lshl_b32 s{t0}, s3, 8"); A(f"v_add_u32 v{MR}, s{t0}, v{T+2}")
    A(f"s_lshr_b32 s{t1}, s3, 1"); A(f"s_lshl_b32 s{t0}, s{t1}, 3"); A(f"s_add_u32 s{t0}, s{t0}, 2048")
    A(f"v_mul_u32_u24 v{T+2}, {16384+32}, v{T}"); A(f"v_add_u32 v{MLR}, s{t0}, v{T+2}")
    A(f"s_lshl_b32 s{t0}, s{R.sg}, 2"); A(f"s_add_u32 s{t0}, s{t0}, s{t1}"); A(f"s_lshl_b32 s{t0}, s{t0}, 5"); A(f"s_add_u32 s{t0}, s{t0}, s{R.ss}")
    A(f"s_lshl_b32 s{t0}, s{t0}, 8"); A(f"s_and_b32 s{t2}, s3, 1"); A(f"s_lshl_b32 s{t2}, s{t2}, 7"); A(f"s_add_u32 s{t0}, s{t0}, s{t2}")
    A(f"s_add_u32 s{t0}, s{t0}, {WS_PO}")
    A(f"v_lshlrev_b32 v{T+2}, 4, v{T+1}"); A(f"v_add_u32 v{POS}, s{t0}, v{T+2}")
    A(f"s_lshl_b32 s{t0}, s{R.sg}, 10"); A(f"s_lshl_b32 s{t2}, s{R.ss}, 5"); A(f"s_add_u32 s{t0}, s{t0}, s{t2}")
    A(f"s_lshl_b32 s{t2}, s{t1}, 3"); A(f"s_add_u32 s{t0}, s{t0}, s{t2}"); A(f"s_add_u32 s{t0}, s{t0}, {WS_ML}")
    A(f"s_bitcmp0_b32 s3, 0"); A(f"s_cselect_b32 s{t0}, s{t0}, {hex(OOR)}")
    A(f"v_mov_b32 v{MLS}, s{t0}")
    s_pj(A, t2, t3)
    A(f"s_lshl_b32 s{t0}, s{t2}, 1"); A(f"s_lshr_b32 s{t1}, s3, 2"); A(f"s_add_u32 s{t0}, s{t0}, s{t1}")
    A(f"s_and_b32 s{t1}, s{t0}, 3"); A(f"s_lshl_b32 s{t1}, s{t1}, 3")
    A(f"s_lshl_b32 s{t0}, s{t0}, 13")
    A(f"s_and_b32 s{R.t0+4}, s3, 3"); A(f"s_lshl_b32 s{R.t0+4}, s{R.t0+4}, 6"); A(f"s_add_u32 s{t0}, s{t0}, s{R.t0+4}")
    A(f"s_add_u32 s{t0}, s{t0}, {WS_PO}")
    A(f"v_and_b32 v{T}, 3, v2"); A(f"v_lshrrev_b32 v{T+1}, 2, v2")
    A(f"v_lshlrev_b32 v{T+2}, 8, v{T+1}"); A(f"v_lshl_add_u32 v{T+2}, v{T}, 4, v{T+2}"); A(f"v_add_u32 v{OG}, s{t0}, v{T+2}")
    A(f"s_lshl_b32 s{t0}, s{R.sg}, 10"); A(f"s_add_u32 s{t0}, s{t0}, s{t1}"); A(f"s_add_u32 s{t0}, s{t0}, {WS_ML}")
    A(f"v_lshlrev_b32 v{T+2}, 5, v{T+1}"); A(f"v_add_u32 v{MLG}, s{t0}, v{T+2}")
    A(f"v_bfe_u32 v{T}, v2, 2, 2"); A(f"v_lshlrev_b32 v{T}, 5, v{T}")
    A(f"v_bfe_u32 v{T+1}, v2, 5, 1"); A(f"v_lshl_add_u32 v{T}, v{T+1}, 4, v{T}")
    A(f"v_bfe_u32 v{T+2}, v2, 4, 1"); A(f"v_lshl_add_u32 v{T}, v{T+2}, 3, v{T}")
    A(f"s_lshl_b32 s{t0}, s3, 7"); A(f"s_add_u32 s{t0}, s{t0}, {L_WP}"); A(f"v_add_u32 v{WPW}, s{t0}, v{T}")
    A(f"v_and_b32 v{T}, 7, v2"); A(f"v_lshrrev_b32 v{T+3}, 3, v2"); A(f"v_lshlrev_b32 v{T+3}, 4, v{T+3}")
    A(f"v_lshl_add_u32 v{T}, v{T}, 7, v{T+3}"); A(f"v_add_u32 v{WPR}, {L_WP}, v{T}")
    A(f"s_lshl_b32 s{t0}, s{t2}, 11"); A(f"s_lshl_b32 s{t3}, s{t3}, 7"); A(f"s_add_u32 s{t0}, s{t0}, s{t3}"); A(f"s_add_u32 s{t0}, s{t0}, {WS_AP}")
    A(f"v_add_u32 v{APS}, s{t0}, v{T+3}")
    A(f"v_and_b32 v{T}, 15, v2"); A(f"v_lshrrev_b32 v{T+3}, 4, v2")
    A(f"v_lshlrev_b32 v{T+3}, 13, v{T+3}"); A(f"v_lshl_add_u32 v{T+3}, v{T}, 4, v{T+3}")
    A(f"s_lshl_b32 s{t0}, s3, 8"); A(f"s_add_u32 s{t1}, s{t0}, {WS_AP}"); A(f"v_add_u32 v{APG}, s{t1}, v{T+3}")
    A(f"v_lshlrev_b32 v{T}, 4, v{T}"); A(f"v_lshl_add_u32 v{T}, v{T+1}, 3, v{T}"); A(f"v_lshl_add_u32 v{T}, v{T+2}, 2, v{T}")
    A(f"s_add_u32 s{t0}, s{t0}, {L_HB}"); A(f"v_add_u32 v{HBW}, s{t0}, v{T}")

def stage_M(A, c):
    T = R.T
    allred(A, 'add', R.l, ['p16', 'p32'], T)
    for r in range(32): A(f"v_add_f32_dpp v{R.acc+r}, v{R.acc+r}, v{R.acc+r} row_ror:4 {DPPM}")
    A(f"v_mov_b32 v{R.m}, v{R.mm}"); A(f"v_mov_b32 v{R.m+1}, v{R.l}")
    setexec(A, 0x000f000f000f000f)
    for t in range(8): A(f"ds_write_b128 v{MW+(t&3)}, v[{R.acc+4*t}:{R.acc+4*t+3}] offset:{256*(t>>2)}")
    setexec(A, 0xf)
    A(f"ds_write_b64 v{MLW}, v[{R.m}:{R.m+1}]")
    A("s_mov_b64 exec, -1")
    A("s_waitcnt lgkmcnt(0)")
    stamp(A, c, 6)
    A("s_barrier")
    stamp(A, c, 7)
    K = R.K
    A(f"ds_read_b64 v[{K}:{K+1}], v{MLR}")
    A(f"ds_read_b128 v[{K+4}:{K+7}], v{MR}"); A(f"ds_read_b128 v[{K+8}:{K+11}], v{MR} offset:16")
    A("s_waitcnt lgkmcnt(2)")
    A(f"v_mov_b32 v{K+2}, v{K}")
    dpp_red(A, 'max', [K+2], ['q1', 'q2', 'hm'])
    A(f"v_sub_f32 v{K}, v{K}, v{K+2}"); A(f"v_exp_f32 v{K}, v{K}")
    A(f"v_mul_f32 v{K+3}, v{K}, v{K+1}")
    A("s_waitcnt lgkmcnt(0)")
    for i in range(8): A(f"v_mul_f32 v{K+4+i}, v{K+4+i}, v{K}")
    dpp_red(A, 'add', [K+3] + [K+4+i for i in range(8)], ['q1', 'q2', 'hm'])
    for i in range(4): A(f"v_cvt_pk_bf16_f32 v{K+4+i}, v{K+4+2*i}, v{K+5+2*i}")
    for i in range(4): A(f"v_min_u32 v{K+4+i}, -2, v{K+4+i}")
    setexec(A, 0x0101010101010101)
    A(f"buffer_store_dwordx4 v[{K+4}:{K+7}], v{POS}, {S(R.sW)}, 0 offen sc1")
    setexec(A, 1)
    A(f"buffer_store_dwordx2 v[{K+2}:{K+3}], v{MLS}, {S(R.sW)}, 0 offen sc1")
    A("s_mov_b64 exec, -1")
    stamp(A, c, 8)

def stage_W(A, c, bail):
    K = R.K; V = R.V; T = R.T
    O0 = K + 12; O1 = K + 16 - 0
    O0 = 56; O1 = 60; M0 = 64; M1 = 66
    def iss():
        A(f"buffer_load_dwordx2 v[{M0}:{M0+1}], v{MLG}, {S(R.sW)}, 0 offen sc1")
        A(f"buffer_load_dwordx2 v[{M1}:{M1+1}], v{MLG}, {S(R.sW)}, 0 offen offset:512 sc1")
        A(f"buffer_load_dwordx4 v[{O0}:{O0+3}], v{OG}, {S(R.sW)}, 0 offen sc1")
        A(f"buffer_load_dwordx4 v[{O1}:{O1+3}], v{OG}, {S(R.sW)}, s{R.s4k} offen sc1")
    def extra():
        for i in range(4):
            unpack(A, 100+2*i, 101+2*i, R.GU+i); unpack(A, 108+2*i, 109+2*i, R.GU+4+i)
        A(f"v_lshlrev_b32 v{R.XU}, 16, v{R.XU}")
    def chk(): chk_sent(A, list(range(O0, O0+8)) + [M0, M0+1, M1, M1+1], 68)
    poll(A, "wg", iss, chk, bail, extra)
    stamp(A, c, 9)
    A(f"v_max_f32 v68, v{M0}, v{M1}")
    allred(A, 'max', 68, ['r4', 'r8', 'p16', 'p32'], 69)
    A(f"v_sub_f32 v{M0}, v{M0}, v68"); A(f"v_sub_f32 v{M1}, v{M1}, v68")
    A(f"v_exp_f32 v{M0}, v{M0}"); A(f"v_exp_f32 v{M1}, v{M1}")
    A(f"v_mul_f32 v68, v{M0}, v{M0+1}"); A(f"v_fmac_f32 v68, v{M1}, v{M1+1}")
    for i in range(4):
        unpack(A, 70, 71, O0+i); unpack(A, 72, 73, O1+i)
        A(f"v_mul_f32 v{44+2*i}, v70, v{M0}"); A(f"v_mul_f32 v{45+2*i}, v71, v{M0}")
        A(f"v_fmac_f32 v{44+2*i}, v72, v{M1}"); A(f"v_fmac_f32 v{45+2*i}, v73, v{M1}")
    allred(A, 'add', 68, ['r4', 'r8', 'p16', 'p32'], 69)
    rs32(A, [(44+e, 48+e) for e in range(4)])
    rs16(A, [(44, 46), (45, 47)])
    A("v_rcp_f32 v69, v68")
    dpp_red(A, 'add', [44, 45], ['r4', 'r8'])
    A("v_mul_f32 v44, v44, v69"); A("v_mul_f32 v45, v45, v69")
    A("v_cvt_pk_bf16_f32 v44, v44, v45")
    for k in range(8):
        wr = R.WO + (k >> 1) + 4 * (k & 1)
        A(f"v_dot2_f32_bf16 v{48+k}, v44, v{wr}, 0")
    rs32(A, [(48+k, 52+k) for k in range(4)])
    rs16(A, [(48, 50), (49, 51)])
    dpp_red(A, 'add', [48, 49], ['q1', 'q2'])
    setexec(A, 0x1111111111111111)
    A(f"ds_write_b64 v{WPW}, v[48:49]")
    A("s_mov_b64 exec, -1")
    A("s_waitcnt lgkmcnt(0)")
    A("s_barrier")
    sk = A.newlabel("wskip")
    A("s_cmp_lg_u32 s3, 0"); A(f"s_cbranch_scc1 {sk}")
    A(f"ds_read_b128 v[44:47], v{WPR}")
    A("s_waitcnt lgkmcnt(0)")
    dpp_red(A, 'add', [44, 45, 46, 47], ['q1', 'q2', 'hm'])
    setexec(A, 0x0101010101010101)
    A(f"buffer_store_dwordx4 v[44:47], v{APS}, {S(R.sW)}, 0 offen sc1")
    A("s_mov_b64 exec, -1")
    A.label(sk)
    stamp(A, c, 10)

def stage_F(A, c, bail):
    t0, t1, t2, t3 = R.t0, R.t1, R.t2, R.t3
    G = [44, 48, 52, 56]
    FSW, FSR, FPW, FPR, ACTS, ACTG, DPW, DPR, OUTS, HBR = range(60, 70)
    def iss():
        for n in range(4):
            so = "0" if n < 2 else f"s{R.s4k}"
            A(f"buffer_load_dwordx4 v[{G[n]}:{G[n]+3}], v{APG}, {S(R.sW)}, {so} offen offset:{(n&1)*2048} sc1")
    def extra():
        A(f"s_lshl_b32 s{t0}, s3, 3"); A(f"s_add_u32 s{t0}, s{t0}, {L_FS}"); A(f"v_mov_b32 v{FSW}, s{t0}")
        A(f"v_and_b32 v70, 7, v2"); A(f"v_lshrrev_b32 v71, 3, v2")
        A(f"v_lshlrev_b32 v72, 3, v70"); A(f"v_add_u32 v{FSR}, {L_FS}, v72")
        A(f"v_bfe_u32 v72, v2, 5, 1"); A("v_lshlrev_b32 v72, 5, v72"); A("v_bfe_u32 v73, v2, 4, 1"); A("v_lshl_add_u32 v72, v73, 4, v72")
        A(f"s_lshl_b32 s{t0}, s3, 6"); A(f"s_add_u32 s{t0}, s{t0}, {L_FP}"); A(f"v_add_u32 v{FPW}, s{t0}, v72")
        A(f"v_lshlrev_b32 v72, 6, v71"); A("v_lshl_add_u32 v72, v70, 2, v72"); A(f"v_add_u32 v{FPR}, {L_FP}, v72")
        s_cb(A, t2); A(f"s_lshl_b32 s{t2}, s{t2}, 4"); A(f"s_add_u32 s{t2}, s{t2}, {WS_ACT}"); A(f"v_mov_b32 v{ACTS}, s{t2}")
        A(f"s_lshl_b32 s{t0}, s3, 9"); A(f"s_add_u32 s{t0}, s{t0}, {WS_ACT}")
        A(f"v_lshrrev_b32 v72, 1, v2"); A("v_lshlrev_b32 v72, 4, v72"); A(f"v_add_u32 v{ACTG}, s{t0}, v72")
        A("v_and_b32 v72, 1, v2"); A("v_lshlrev_b32 v72, 4, v72"); A("v_lshl_add_u32 v72, v73, 2, v72")
        A("v_bfe_u32 v73, v2, 5, 1"); A("v_lshl_add_u32 v72, v73, 3, v72")
        A(f"s_lshl_b32 s{t0}, s3, 5"); A(f"s_add_u32 s{t0}, s{t0}, {L_DP}"); A(f"v_add_u32 v{DPW}, s{t0}, v72")
        A(f"v_lshlrev_b32 v72, 5, v71"); A("v_lshl_add_u32 v72, v70, 2, v72"); A(f"v_add_u32 v{DPR}, {L_DP}, v72")
        s_cbd(A, t2); A(f"s_lshl_b32 s{t3}, s{t2}, 4"); A(f"v_mov_b32 v{OUTS}, s{t3}")
        A(f"s_lshl_b32 s{t3}, s{t2}, 5"); A(f"s_add_u32 s{t3}, s{t3}, {L_HB}")
        A(f"v_lshlrev_b32 v72, 2, v70"); A(f"v_add_u32 v{HBR}, s{t3}, v72")
    def chk(): chk_sent(A, list(range(44, 60)), 74)
    poll(A, "fg", iss, chk, bail, extra)
    stamp(A, c, 11)
    for i in range(4):
        A(f"v_add_f32 v{44+i}, v{44+i}, v{48+i}"); A(f"v_add_f32 v{52+i}, v{52+i}, v{56+i}")
    for i in range(4): A(f"v_add_f32 v{44+i}, v{44+i}, v{52+i}")
    rs32(A, [(44, 46), (45, 47)])
    rs16(A, [(44, 45)])
    rnd_bf16(A, 44)
    A(f"v_add_f32 v44, v44, v{R.XU}")
    rnd_bf16(A, 44)
    A(f"ds_write_b32 v{HBW}, v44")
    A("v_mov_b32 v46, v44"); A("v_mul_f32 v47, v44, v44")
    allred_multi(A, 'add', [46, 47], FULL, [48, 49])
    setexec(A, 1)
    A(f"ds_write_b64 v{FSW}, v[46:47]")
    A("s_mov_b64 exec, -1")
    A("s_waitcnt lgkmcnt(0)")
    A("s_barrier")
    A(f"ds_read_b64 v[46:47], v{FSR}")
    A("s_waitcnt lgkmcnt(0)")
    dpp_red(A, 'add', [46, 47], ['q1', 'q2', 'hm'])
    A("v_mul_f32 v46, 0x3b000000, v46"); A("v_mul_f32 v47, 0x3b000000, v47")
    A("v_fma_f32 v47, -v46, v46, v47")
    rnd_bf16_pair(A, 46, 47, 48)
    A(f"v_add_f32 v47, {EPS}, v47")
    rnd_bf16(A, 47)
    A("v_sqrt_f32 v47, v47")
    A("v_sub_f32 v44, v44, v46")
    rnd_bf16(A, 47)
    rnd_bf16(A, 44)
    A("v_rcp_f32 v48, v47")
    A("v_mul_f32 v49, v44, v48"); A("v_fma_f32 v44, -v49, v47, v44"); A("v_fma_f32 v44, v44, v48, v49")
    rnd_bf16(A, 44)
    for k in range(16): A(f"v_mul_f32 v{100+k}, v{100+k}, v44")
    rs32(A, [(100+k, 108+k) for k in range(8)])
    rs16(A, [(100+k, 104+k) for k in range(4)])
    dpp_red(A, 'add', [100, 101, 102, 103], ['q1', 'q2', 'r4', 'r8'])
    setexec(A, 0x0001000100010001)
    A(f"ds_write_b128 v{FPW}, v[100:103]")
    A("s_mov_b64 exec, -1")
    A("s_waitcnt lgkmcnt(0)")
    A("s_barrier")
    sk = A.newlabel("fskip")
    A("s_cmp_lg_u32 s3, 0"); A(f"s_cbranch_scc1 {sk}")
    A(f"ds_read_b32 v44, v{FPR}"); A(f"ds_read_b32 v45, v{FPR} offset:32")
    A("s_waitcnt lgkmcnt(0)")
    allred_multi(A, 'add', [44, 45], ['r8', 'p16', 'p32'], [46, 47])
    rnd_bf16_pair(A, 44, 45, 46)
    gelu_mul(A, 44, 45, 46)
    pack8(A, 44, 48)
    setexec(A, 1)
    A(f"buffer_store_dwordx4 v[48:51], v{ACTS}, {S(R.sW)}, 0 offen sc1")
    A("s_mov_b64 exec, -1")
    A.label(sk)
    stamp(A, c, 12)
    return ACTG, DPW, DPR, OUTS, HBR

def pack8(A, v, d, sanitize=True):
    A(f"v_mov_b32_dpp v{d+1}, v{v} row_shl:1 {DPPM}")
    A(f"v_and_b32 v{v}, 0xffff, v{v}")
    A(f"v_lshl_or_b32 v{d}, v{d+1}, 16, v{v}")
    if sanitize: A(f"v_min_u32 v{d}, -2, v{d}")
    for k in range(1, 4): A(f"v_mov_b32_dpp v{d+k}, v{d} row_shl:{2*k} {DPPM}")

def stage_D(A, c, bail, regs):
    ACTG, DPW, DPR, OUTS, HBR = regs
    sk = A.newlabel("dskip")
    A("s_cmp_eq_u32 s3, 7"); A(f"s_cbranch_scc1 {sk}")
    def iss(): A(f"buffer_load_dwordx4 v[44:47], v{ACTG}, {S(R.sW)}, 0 offen sc1")
    def chk(): chk_sent(A, [44, 45, 46, 47], 48)
    poll(A, "dg", iss, chk, bail)
    stamp(A, c, 13)
    cols = [0, 2, 1, 3]
    for e2 in range(4):
        for k in range(4):
            src2 = "0" if e2 == 0 else f"v{52+k}"
            A(f"v_dot2_f32_bf16 v{52+k}, v{44+e2}, v{R.DW + 4*e2 + cols[k]}, {src2}")
    rs32(A, [(52, 54), (53, 55)])
    rs16(A, [(52, 53)])
    dpp_red(A, 'add', [52], ['q2', 'r4', 'r8'])
    setexec(A, 0x0003000300030003)
    A(f"ds_write_b32 v{DPW}, v52")
    A("s_mov_b64 exec, -1")
    A.label(sk)
    A("s_waitcnt lgkmcnt(0)")
    A("s_barrier")
    A("s_cmp_lg_u32 s3, 0"); A(f"s_cbranch_scc1 {bail}")
    A(f"ds_read_b32 v44, v{DPR}"); A(f"ds_read_b32 v45, v{HBR}")
    A("v_cmp_gt_u32 vcc, 56, v2")
    A("s_waitcnt lgkmcnt(0)")
    A("v_cndmask_b32 v44, 0, v44, vcc")
    allred(A, 'add', 44, ['r8', 'p16', 'p32'], 46)
    rnd_bf16(A, 44)
    A("v_add_f32 v44, v44, v45")
    A("v_cvt_pk_bf16_f32 v44, v44, v44")
    pack8(A, 44, 48, sanitize=False)
    setexec(A, 1)
    A(f"buffer_store_dwordx4 v[48:51], v{OUTS}, {S(R.sOut)}, 0 offen")
    A("s_mov_b64 exec, -1")
    stamp(A, c, 14)

def main_waves(A, c):
    t0, t1, t2, t3 = R.t0, R.t1, R.t2, R.t3
    end = "M_end"
    att_setup_addr(A)
    A(f"s_lshl_b32 s{t0}, s{R.sg}, 24"); A(f"s_lshl_b32 s{t1}, s{R.ss}, 19"); A(f"s_add_u32 s{t0}, s{t0}, s{t1}")
    A(f"s_lshl_b32 s{t1}, s3, 12"); A(f"s_add_u32 s{R.sOffK}, s{t0}, s{t1}"); A(f"s_mov_b32 s{R.sOffV}, s{R.sOffK}")
    A("v_and_b32 v3, 7, v2"); A("v_lshrrev_b32 v4, 3, v2")
    A(f"s_lshl_b32 s{t0}, s{R.sg}, 10"); A(f"s_lshl_b32 s{t1}, s{R.ss}, 5"); A(f"s_add_u32 s{t0}, s{t0}, s{t1}")
    A(f"s_lshl_b32 s{t1}, s3, 19"); A(f"s_add_u32 s{t0}, s{t0}, s{t1}")
    A("v_lshlrev_b32 v5, 16, v4"); A("v_lshl_add_u32 v5, v3, 2, v5"); A(f"v_add_u32 v5, s{t0}, v5")
    A("v_lshlrev_b32 v6, 4, v2")
    A(f"s_lshl_b32 s{t1}, s3, 7"); A("v_lshlrev_b32 v7, 4, v4"); A(f"v_add_u32 v7, s{t1}, v7")
    for i in range(1, 8): A(f"s_mov_b32 s{86+i}, {i*8192}")
    A("s_waitcnt lgkmcnt(0)")
    stamp0(A, c, 1)
    srd(A, R.sX, 56, 1024); srd(A, R.sWq, 62, 512*8192)
    A(f"buffer_load_dwordx4 v[44:47], v6, {S(R.sX)}, 0 offen")
    A(f"buffer_load_dwordx4 v[48:51], v7, {S(R.sX)}, 0 offen")
    for i in range(8):
        so = "0" if i == 0 else f"s{86+i}"
        A(f"buffer_load_dword v{52+i}, v5, {S(R.sWq)}, {so} offen")
    srd(A, R.sK, 58, 0x8000000); srd(A, R.sV, 60, 0x8000000)
    if c.bar0: A("s_barrier")
    for (wh, sl) in SLOTS[:c.n0]: att_issue(A, wh, sl)
    srd(A, R.sW, 78, WS_SZ); srd(A, R.sWo, 64, 4096*1024); srd(A, R.sG, 68, 512*3584); srd(A, R.sU, 70, 512*3584)
    srd(A, R.sD, 72, 1792*1024); srd(A, R.sOut, 74, 1024)
    att_setup_addr2(A)
    att_init_state(A)
    nd = 4 * c.n0
    A(f"s_waitcnt vmcnt({9+nd})")
    for i in range(4): unpack(A, 60+2*i, 61+2*i, 44+i)
    ln_stats(A, 60, 8, 72, 68, 69, 70)
    A(f"s_waitcnt vmcnt({8+nd})")
    for i in range(4): unpack(A, 60+2*i, 61+2*i, 48+i)
    ln_apply(A, 60, 8, 68, 69, 70, 72)
    A(f"s_waitcnt vmcnt({nd})")
    stamp(A, c, 1)
    for i in range(8):
        unpack(A, 72, 73, 52+i)
        if i == 0:
            A("v_mul_f32 v74, v60, v72"); A("v_mul_f32 v75, v60, v73")
        else:
            A(f"v_fmac_f32 v74, v{60+i}, v72"); A(f"v_fmac_f32 v75, v{60+i}, v73")
    allred_multi(A, 'add', [74, 75], ['r8', 'p16', 'p32'], [76, 77])
    A(f"s_lshl_b32 s{t0}, s3, 6"); A(f"s_add_u32 s{t0}, s{t0}, {L_QP}")
    A("v_lshlrev_b32 v7, 3, v2"); A(f"v_add_u32 v7, s{t0}, v7")
    setexec(A, 0xff)
    A("ds_write_b64 v7, v[74:75]")
    A("s_mov_b64 exec, -1")
    A("s_waitcnt lgkmcnt(0)")
    A("s_barrier")
    stamp(A, c, 2)
    if c.late == 'A':
        for (wh, sl) in SLOTS[c.n0:]: att_issue(A, wh, sl)
    A("v_and_b32 v5, 3, v2"); A("v_lshlrev_b32 v5, 8, v5"); A("v_lshrrev_b32 v6, 4, v2"); A("v_lshl_add_u32 v5, v6, 4, v5")
    A(f"v_add_u32 v5, {L_QL}, v5")
    A("s_barrier")
    stamp(A, c, 3)
    if c.late == 'B':
        for (wh, sl) in SLOTS[c.n0:]: att_issue(A, wh, sl)
    for j in range(4): A(f"ds_read_b128 v[{R.Q+4*j}:{R.Q+4*j+3}], v5 offset:{64*j}")
    A("s_waitcnt lgkmcnt(0)")
    att_unit(A, 0, 12, 12, True)
    tail_weights_issue(A, c)
    stamp(A, c, 4)
    att_unit(A, 1, 12+NW, 12+NW, True)
    att_unit(A, 0, 12+NW, 12+NW, True)
    att_unit(A, 1, 12, 12, True)
    tail_weights_permute(A)
    A(f"s_mov_b32 s{R.sCnt}, 5")
    lp = A.newlabel("attloop")
    A.label(lp)
    att_unit(A, 0, 12, 12, True)
    att_unit(A, 1, 12, 12, True)
    A(f"s_sub_u32 s{R.sCnt}, s{R.sCnt}, 1"); A(f"s_cmp_lg_u32 s{R.sCnt}, 0"); A(f"s_cbranch_scc1 {lp}")
    tail_addr(A)
    att_unit(A, 0, 12, 8, False)
    att_unit(A, 1, 4, 0, False)
    stamp(A, c, 5)
    stage_M(A, c)
    stage_W(A, c, end)
    A("s_cmp_ge_u32 s2, 224"); A(f"s_cbranch_scc1 {end}")
    regs = stage_F(A, c, end)
    A("s_cmp_ge_u32 s2, 64"); A(f"s_cbranch_scc1 {end}")
    stage_D(A, c, end, regs)
    A.label(end)
    stamp(A, c, 15)
    flush_ts(A, c)
    A("s_endpgm")

def gen(c=None):
    c = c or Cfg()
    A = Asm()
    A("s_cmp_ge_u32 s2, 256")
    A("s_cbranch_scc1 K_exit")
    stamp0(A, c, 0)
    A("s_load_dwordx16 s[56:71], s[0:1], 0")
    A("s_load_dwordx8 s[72:79], s[0:1], 64")
    A("v_lshrrev_b32 v1, 6, v0")
    A("v_readfirstlane_b32 s3, v1")
    A("v_and_b32 v2, 63, v0")
    if c.ts: A(f"v_mov_b32 v{R.TS}, 0")
    role_scalars(A)
    A("s_cmp_eq_u32 s3, 8")
    A("s_cbranch_scc1 K_helper")
    main_waves(A, c)
    A.label("K_helper")
    helper(A, c)
    A.label("K_exit")
    A("s_endpgm")
    out = f"; fused pre-LN GQA attention + GEGLU FFN decode step : 256 persistent workgroups, 8 streaming waves + 1 hand-off wave\n"
    out += f"; @launch grid=(256,1,1) block=(576,1,1) lds={LDS}\n"
    out += '.amdgcn_target "amdgcn-amd-amdhsa--gfx950"\n.text\n'
    out += khead(KNAME) + A.finalize()
    out += '.section .rodata,"a"\n.p2align 6\n' + kdesc(KNAME, 168, sgpr=102)
    return out

if __name__ == "__main__":
    kw = {}
    for a in sys.argv[2:]:
        k, v = a.split("=")
        kw[k] = int(v) if v.lstrip('-').isdigit() else v
    open(sys.argv[1], "w").write(gen(Cfg(**kw)))
```

```python
from asmlib import Asm
LOG2E = "0x3fb8aa3b"
SCALE = "0x3db504f3"
EPS   = "0x3727c5ac"
DPPM = "row_mask:0xf bank_mask:0xf"

def allred(A, op, v, steps, tmp):
    ins = {'add': 'v_add_f32', 'max': 'v_max_f32'}[op]
    for s in steps:
        if s == 'q1': A(f"{ins}_dpp v{v}, v{v}, v{v} quad_perm:[1,0,3,2] {DPPM}")
        elif s == 'q2': A(f"{ins}_dpp v{v}, v{v}, v{v} quad_perm:[2,3,0,1] {DPPM}")
        elif s == 'r4': A(f"{ins}_dpp v{v}, v{v}, v{v} row_ror:4 {DPPM}")
        elif s == 'r8': A(f"{ins}_dpp v{v}, v{v}, v{v} row_ror:8 {DPPM}")
        elif s == 'p16':
            A(f"v_mov_b32 v{tmp}, v{v}"); A(f"v_permlane16_swap_b32 v{v}, v{tmp}"); A(f"{ins} v{v}, v{v}, v{tmp}")
        elif s == 'p32':
            A(f"v_mov_b32 v{tmp}, v{v}"); A(f"v_permlane32_swap_b32 v{v}, v{tmp}"); A(f"{ins} v{v}, v{v}, v{tmp}")

def allred_multi(A, op, vs, steps, tmps):
    ins = {'add': 'v_add_f32', 'max': 'v_max_f32'}[op]
    for s in steps:
        if s in ('q1', 'q2', 'r4', 'r8'):
            mod = {'q1': 'quad_perm:[1,0,3,2]', 'q2': 'quad_perm:[2,3,0,1]', 'r4': 'row_ror:4', 'r8': 'row_ror:8'}[s]
            for v in vs: A(f"{ins}_dpp v{v}, v{v}, v{v} {mod} {DPPM}")
        else:
            sw = 'v_permlane16_swap_b32' if s == 'p16' else 'v_permlane32_swap_b32'
            for v, t in zip(vs, tmps): A(f"v_mov_b32 v{t}, v{v}")
            for v, t in zip(vs, tmps): A(f"{sw} v{v}, v{t}")
            for v, t in zip(vs, tmps): A(f"{ins} v{v}, v{v}, v{t}")

FULL = ['q1', 'q2', 'r4', 'r8', 'p16', 'p32']

def unpack(A, lo, hi, src):
    A(f"v_lshlrev_b32 v{lo}, 16, v{src}")
    A(f"v_and_b32 v{hi}, 0xffff0000, v{src}")

def rnd_bf16(A, v, t=None):
    A(f"v_cvt_pk_bf16_f32 v{v}, v{v}, v{v}")
    A(f"v_lshlrev_b32 v{v}, 16, v{v}")

def rnd_bf16_pair(A, a, b, t):
    A(f"v_cvt_pk_bf16_f32 v{t}, v{a}, v{b}")
    A(f"v_lshlrev_b32 v{a}, 16, v{t}")
    A(f"v_and_b32 v{b}, 0xffff0000, v{t}")

def ln_stats(A, f, n, t, vm, vs, vr):
    s = t
    A(f"v_add_f32 v{s}, v{f}, v{f+1}")
    for i in range(2, n): A(f"v_add_f32 v{s}, v{s}, v{f+i}")
    allred(A, 'add', s, FULL, t + 1)
    A(f"v_mul_f32 v{s}, 0x3b000000, v{s}")
    q = t + 1
    for i in range(n):
        A(f"v_sub_f32 v{t+2}, v{f+i}, v{s}")
        if i == 0: A(f"v_mul_f32 v{q}, v{t+2}, v{t+2}")
        else: A(f"v_fmac_f32 v{q}, v{t+2}, v{t+2}")
    allred(A, 'add', q, FULL, t + 2)
    A(f"v_mul_f32 v{q}, 0x3b000000, v{q}")
    rnd_bf16_pair(A, s, q, t + 2)
    A(f"v_mov_b32 v{vm}, v{s}")
    A(f"v_add_f32 v{q}, {EPS}, v{q}")
    rnd_bf16(A, q)
    A(f"v_sqrt_f32 v{q}, v{q}")
    rnd_bf16(A, q)
    A(f"v_mov_b32 v{vs}, v{q}")
    A(f"v_rcp_f32 v{vr}, v{q}")

def ln_apply(A, f, n, vm, vs, vr, t):
    for i in range(0, n, 2):
        A(f"v_sub_f32 v{f+i}, v{f+i}, v{vm}")
        A(f"v_sub_f32 v{f+i+1}, v{f+i+1}, v{vm}")
        rnd_bf16_pair(A, f + i, f + i + 1, t)
        for k in (0, 1):
            x = f + i + k
            A(f"v_mul_f32 v{t+1+k}, v{x}, v{vr}")
        for k in (0, 1):
            x = f + i + k
            A(f"v_fma_f32 v{x}, -v{t+1+k}, v{vs}, v{x}")
        for k in (0, 1):
            x = f + i + k
            A(f"v_fma_f32 v{x}, v{x}, v{vr}, v{t+1+k}")
        rnd_bf16_pair(A, f + i, f + i + 1, t)

def srd(A, s, ptr, size):
    A(f"s_mov_b32 s{s}, s{ptr}")
    A(f"s_and_b32 s{s+1}, s{ptr+1}, 0xffff")
    A(f"s_mov_b32 s{s+2}, {hex(size)}")
    A(f"s_mov_b32 s{s+3}, 0x20000")

def kdesc(name, vgpr, sgpr=96, acc=None):
    acc = acc or ((vgpr + 3) // 4 * 4)
    return f""".amdhsa_kernel {name}
  .amdhsa_next_free_vgpr {vgpr}
  .amdhsa_next_free_sgpr {sgpr}
  .amdhsa_accum_offset {acc}
  .amdhsa_group_segment_fixed_size 0
  .amdhsa_kernarg_size 96
  .amdhsa_user_sgpr_count 2
  .amdhsa_user_sgpr_kernarg_segment_ptr 1
  .amdhsa_system_sgpr_workgroup_id_x 1
.end_amdhsa_kernel
"""
def khead(name):
    return f".globl {name}\n.p2align 8\n.type {name},@function\n{name}:\n"
```

```python
import sys
from asmlib import Asm
from phases import *
import gen_v1
from gen_v1 import gelu_mul
from gen_v2 import (R, S, setexec, rs32, rs16, dpp_red, chk_sent, att_setup_addr, att_setup_addr2, att_init_state, SLOTS, KNAME, OOR, SPIN)

NS = 24
NF = 56
BASEU = 4096 // (8 * NS)
REM = 4096 - 8 * NS * BASEU
XLO = REM // NS; XHI = REM - XLO * NS
WS_Q  = 0x0
WS_ML = 0x10000
WS_AP = 0x20000
WS_FP = 0x40000
WS_PO = 0x100000
WS_TS = 0x200000
WS_SZ = 0x400000
L_QP = 131072; L_QL = L_QP + 2048; LDS = L_QL + 1024
L_WP = 0; L_HB = 2048; L_HN = 4096; L_FS = 5120; L_FP = 6144
TS = 165

class Cfg:
    def __init__(self, **kw):
        self.n0 = 2; self.late = 'A'; self.ts = 1; self.bar0 = True; self.hprio = 3; self.sslp = 4
        self.wl = 'ogd'; self.wnt = 1; self.kf = 3; self.hslp = 32; self.thr = 1; self.mslp = 8; self.qnt = 1; self.mpoll = 1
        self.__dict__.update(kw)

def stamp(A, c, k):
    if not c.ts: return
    A(f"s_memrealtime s[{R.sEx}:{R.sEx+1}]"); A("s_waitcnt lgkmcnt(0)"); A(f"v_writelane_b32 v{TS}, s{R.sEx}, {k}")
def stamp0(A, c, phase):
    if not c.ts: return
    if phase == 0: A(f"s_memrealtime s[{R.sEx}:{R.sEx+1}]")
    else: A(f"v_writelane_b32 v{TS}, s{R.sEx}, 0")
def flush_ts(A, c):
    if not c.ts: return
    W = 256 if c.ts >= 2 else 128
    A(f"s_mul_i32 s{R.t0}, s2, {9*W}"); A(f"s_mul_i32 s{R.t1}, s3, {W}"); A(f"s_add_u32 s{R.t0}, s{R.t0}, s{R.t1}")
    A(f"s_add_u32 s{R.t0}, s{R.t0}, {WS_TS}")
    A("s_mov_b64 exec, -1")
    A("v_and_b32 v3, 63, v0"); A(f"v_lshlrev_b32 v3, 2, v3"); A(f"v_add_u32 v3, s{R.t0}, v3")
    if c.ts < 2: A("s_mov_b32 exec_lo, -1"); A("s_mov_b32 exec_hi, 0")
    A(f"buffer_store_dword v{TS}, v3, {S(R.sW)}, 0 offen")

def poll(A, name, issue, check, bail, extra=None, sleep=1):
    lw = A.newlabel(name + "_w"); ld = A.newlabel(name + "_d")
    A(f"s_mov_b32 s{R.sSpin}, 0")
    issue()
    if extra: extra()
    A.label(lw)
    A("s_waitcnt vmcnt(0)")
    check()
    A(f"s_cbranch_vccz {ld}")
    A(f"s_add_u32 s{R.sSpin}, s{R.sSpin}, 1"); A(f"s_cmp_gt_u32 s{R.sSpin}, {SPIN}"); A(f"s_cbranch_scc1 {bail}")
    if sleep: A(f"s_sleep {sleep}")
    issue()
    A(f"s_branch {lw}")
    A.label(ld)

def mpoll(A, c, name, n, ld, regs, t, bail, sleep):
    SM = 60 if name != "dg" else 68
    if not c.mpoll:
        def iss():
            for j in range(n): ld(j)
        def chk(): chk_sent(A, sum([regs(j) for j in range(n)], []), t)
        poll(A, name, iss, chk, bail, sleep=sleep)
        return
    lw = A.newlabel(name + "_w"); ldn = A.newlabel(name + "_d")
    A(f"s_mov_b32 s{R.sSpin}, 0")
    for j in range(n): ld(j)
    A.label(lw)
    A("s_waitcnt vmcnt(0)")
    for j in range(n):
        chk_sent(A, regs(j), t)
        A(f"s_mov_b64 s[{SM+2*j}:{SM+2*j+1}], vcc")
    A(f"s_or_b64 vcc, s[{SM}:{SM+1}], s[{SM+2}:{SM+3}]")
    for j in range(2, n): A(f"s_or_b64 vcc, vcc, s[{SM+2*j}:{SM+2*j+1}]")
    A(f"s_cbranch_vccz {ldn}")
    A(f"s_add_u32 s{R.sSpin}, s{R.sSpin}, 1"); A(f"s_cmp_gt_u32 s{R.sSpin}, {SPIN}"); A(f"s_cbranch_scc1 {bail}")
    if sleep: A(f"s_sleep {sleep}")
    for j in range(n):
        sk = A.newlabel(name + "_s")
        A(f"s_mov_b64 exec, s[{SM+2*j}:{SM+2*j+1}]")
        A(f"s_cbranch_execz {sk}")
        ld(j)
        A.label(sk)
    A("s_mov_b64 exec, -1")
    A(f"s_branch {lw}")
    A.label(ldn)

def bank_rs(A, pairs, mode):
    mod, m0, m1 = {'r8': ("row_ror:8", 0x3, 0xc), 'hm': ("row_half_mirror", 0x5, 0xa)}[mode]
    for a, b in pairs: A(f"v_add_f32_dpp v{a}, v{a}, v{a} {mod} row_mask:0xf bank_mask:{hex(m0)}")
    for a, b in pairs: A(f"v_add_f32_dpp v{a}, v{b}, v{b} {mod} row_mask:0xf bank_mask:{hex(m1)}")

def att_issue(A, which, sl):
    srdn = R.sK if which == 'K' else R.sV
    so = R.sOffK if which == 'K' else R.sOffV
    A(f"s_mov_b32 m0, s{R.sM0 + 2*sl + (0 if which == 'K' else 1)}")
    for n in range(4):
        vo = R.Ko + n if which == 'K' else R.Vo + (n & 1)
        A(f"buffer_load_dwordx4 v{vo}, {S(srdn)}, s{so} offen offset:{n*1024} nt lds")
    A(f"s_add_u32 s{so}, s{so}, 0x8000")
gen_v1.att_issue = att_issue
att_unit = gen_v1.att_unit

MW = 10; MLW = 14; MR = 15; MLR = 3; POS = 4; MLS = 5
def m_addr(A):
    t0, t1, t2 = R.t0, R.t1, R.t2; T = R.T
    A(f"v_lshrrev_b32 v{T}, 4, v2"); A(f"v_lshlrev_b32 v{T}, 4, v{T}")
    A(f"s_lshl_b32 s{t0}, s3, 5"); A(f"v_xor_b32 v{T}, s{t0}, v{T}")
    A(f"v_and_b32 v{T+1}, 3, v2"); A(f"v_lshl_add_u32 v{T}, v{T+1}, 9, v{T}")
    A(f"v_add_u32 v{MW}, s{R.sM0}, v{T}")
    for k in range(1, 4): A(f"v_xor_b32 v{MW+k}, {k<<6}, v{MW}")
    A(f"s_add_u32 s{t0}, s{t0}, s{R.sM0}"); A(f"s_add_u32 s{t0}, s{t0}, 2048")
    A(f"v_lshlrev_b32 v{T+1}, 3, v{T+1}"); A(f"v_add_u32 v{MLW}, s{t0}, v{T+1}")
    A(f"v_and_b32 v{T}, 7, v2"); A(f"v_lshrrev_b32 v{T+1}, 3, v2")
    A(f"v_xor_b32 v{T+2}, v{T}, v{T+1}"); A(f"v_lshlrev_b32 v{T+2}, 5, v{T+2}")
    A(f"v_lshl_add_u32 v{T+2}, v{T}, 14, v{T+2}")
    A(f"s_lshl_b32 s{t0}, s3, 8"); A(f"v_add_u32 v{MR}, s{t0}, v{T+2}")
    A(f"s_lshr_b32 s{t1}, s3, 1"); A(f"s_lshl_b32 s{t0}, s{t1}, 3"); A(f"s_add_u32 s{t0}, s{t0}, 2048")
    A(f"v_mul_u32_u24 v{T+2}, {16384+32}, v{T}"); A(f"v_add_u32 v{MLR}, s{t0}, v{T+2}")
    A(f"s_mul_i32 s{t2}, s{R.sg}, {NS}"); A(f"s_add_u32 s{t2}, s{t2}, s{R.ss}")
    A(f"s_lshl_b32 s{t0}, s{t2}, 10"); A(f"s_lshl_b32 s{R.t3}, s3, 7"); A(f"s_add_u32 s{t0}, s{t0}, s{R.t3}"); A(f"s_add_u32 s{t0}, s{t0}, {WS_PO}")
    A(f"v_lshlrev_b32 v{T+2}, 4, v{T+1}"); A(f"v_add_u32 v{POS}, s{t0}, v{T+2}")
    A(f"s_lshl_b32 s{t0}, s{t2}, 5"); A(f"s_lshl_b32 s{t1}, s{t1}, 3"); A(f"s_add_u32 s{t0}, s{t0}, s{t1}"); A(f"s_add_u32 s{t0}, s{t0}, {WS_ML}")
    A(f"s_bitcmp0_b32 s3, 0"); A(f"s_cselect_b32 s{t0}, s{t0}, {hex(OOR)}")
    A(f"v_mov_b32 v{MLS}, s{t0}")

def stage_M(A, c):
    T = R.T
    allred(A, 'add', R.l, ['p16', 'p32'], T)
    for r in range(32): A(f"v_add_f32_dpp v{R.acc+r}, v{R.acc+r}, v{R.acc+r} row_ror:4 {DPPM}")
    A(f"v_mov_b32 v{R.m}, v{R.mm}"); A(f"v_mov_b32 v{R.m+1}, v{R.l}")
    setexec(A, 0x000f000f000f000f)
    for t in range(8): A(f"ds_write_b128 v{MW+(t&3)}, v[{R.acc+4*t}:{R.acc+4*t+3}] offset:{256*(t>>2)}")
    setexec(A, 0xf)
    A(f"ds_write_b64 v{MLW}, v[{R.m}:{R.m+1}]")
    A("s_mov_b64 exec, -1")
    A("s_waitcnt lgkmcnt(0)")
    stamp(A, c, 6)
    A("s_barrier")
    stamp(A, c, 7)
    K = R.K
    A(f"ds_read_b64 v[{K}:{K+1}], v{MLR}")
    A(f"ds_read_b128 v[{K+4}:{K+7}], v{MR}"); A(f"ds_read_b128 v[{K+8}:{K+11}], v{MR} offset:16")
    A("s_waitcnt lgkmcnt(2)")
    A(f"v_mov_b32 v{K+2}, v{K}")
    dpp_red(A, 'max', [K+2], ['q1', 'q2', 'hm'])
    A(f"v_sub_f32 v{K}, v{K}, v{K+2}"); A(f"v_exp_f32 v{K}, v{K}")
    A(f"v_mul_f32 v{K+3}, v{K}, v{K+1}")
    A("s_waitcnt lgkmcnt(0)")
    for i in range(8): A(f"v_mul_f32 v{K+4+i}, v{K+4+i}, v{K}")
    dpp_red(A, 'add', [K+3] + [K+4+i for i in range(8)], ['q1', 'q2', 'hm'])
    for i in range(4): A(f"v_cvt_pk_bf16_f32 v{K+4+i}, v{K+4+2*i}, v{K+5+2*i}")
    for i in range(4): A(f"v_min_u32 v{K+4+i}, -2, v{K+4+i}")
    setexec(A, 0x0101010101010101)
    A(f"buffer_store_dwordx4 v[{K+4}:{K+7}], v{POS}, {S(R.sW)}, 0 offen sc1")
    setexec(A, 1)
    A(f"buffer_store_dwordx2 v[{K+2}:{K+3}], v{MLS}, {S(R.sW)}, 0 offen sc1")
    A("s_mov_b64 exec, -1")
    stamp(A, c, 8)

def q_phase(A, c):
    t0, t1, t2, t3 = R.t0, R.t1, R.t2, R.t3
    NT = " nt" if c.qnt else ""
    A(f"s_lshr_b32 s{t0}, s{R.ss}, 3"); A(f"s_mul_i32 s{t0}, s{t0}, 192"); A(f"s_mul_i32 s{t1}, s3, 24"); A(f"s_add_u32 s{t0}, s{t0}, s{t1}")
    A("v_lshrrev_b32 v4, 3, v2"); A(f"v_add_u32 v4, s{t0}, v4")
    A(f"s_lshl_b32 s{t1}, s{R.sg}, 10"); A(f"s_and_b32 s{t2}, s{R.ss}, 7"); A(f"s_lshl_b32 s{t2}, s{t2}, 7"); A(f"s_add_u32 s{t1}, s{t1}, s{t2}")
    A("v_and_b32 v3, 7, v2"); A("v_lshlrev_b32 v5, 13, v4"); A("v_lshl_add_u32 v5, v3, 4, v5"); A(f"v_add_u32 v5, s{t1}, v5")
    A("v_lshlrev_b32 v6, 4, v2"); A("v_lshlrev_b32 v7, 1, v4")
    A("s_mov_b32 s87, 0x10000"); A("s_mov_b32 s88, 0x20000")
    A("s_waitcnt lgkmcnt(0)")
    stamp0(A, c, 1)
    srd(A, R.sX, 56, 1024); srd(A, R.sWq, 62, 512*8192)
    A(f"buffer_load_dwordx4 v[44:47], v6, {S(R.sX)}, 0 offen")
    for j in range(3): A(f"buffer_load_ushort v{48+j}, v7, {S(R.sX)}, 0 offen offset:{16*j}")
    for j in range(3):
        so = ["0", "s87", "s88"][j]
        A(f"buffer_load_dwordx4 v[{52+4*j}:{55+4*j}], v5, {S(R.sWq)}, {so} offen{NT}")
    srd(A, R.sK, 58, 0x8000000); srd(A, R.sV, 60, 0x8000000); srd(A, R.sW, 78, WS_SZ)
    if c.bar0: A("s_barrier")

def q_phase2(A, c, nd):
    t0 = R.t0
    A(f"s_waitcnt vmcnt({6+nd})")
    for i in range(4): unpack(A, 64+2*i, 65+2*i, 44+i)
    ln_stats(A, 64, 8, 76, 72, 73, 74)
    A(f"s_waitcnt vmcnt({3+nd})")
    for j in range(3): A(f"v_lshlrev_b32 v{48+j}, 16, v{48+j}")
    A("v_mov_b32 v51, 0")
    ln_apply(A, 48, 4, 72, 73, 74, 76)
    for j in range(3): A(f"v_lshrrev_b32 v{44+j}, 16, v{48+j}")
    A(f"s_waitcnt vmcnt({nd})")
    stamp(A, c, 1)
    for j in range(3):
        for i in range(4):
            for e in range(2):
                src2 = "0" if j == 0 else f"v{64+2*i+e}"
                A(f"v_dot2_f32_bf16 v{64+2*i+e}, v{52+4*j+i}, v{(48 if e else 44)+j}, {src2}")
    Q = 64
    rs32(A, [(Q+j, Q+4+j) for j in range(4)])
    rs16(A, [(Q, Q+2), (Q+1, Q+3)])
    bank_rs(A, [(Q, Q+1)], 'r8')
    A("v_and_b32 v3, 7, v2"); A("v_lshlrev_b32 v3, 3, v3")
    A("v_bfe_u32 v4, v2, 5, 1"); A("v_lshl_add_u32 v3, v4, 2, v3")
    A("v_bfe_u32 v4, v2, 4, 1"); A("v_lshl_add_u32 v3, v4, 1, v3")
    A("v_bfe_u32 v4, v2, 3, 1"); A("v_add_u32 v3, v3, v4")
    A(f"s_lshl_b32 s{t0}, s3, 8"); A(f"s_add_u32 s{t0}, s{t0}, {L_QP}")
    A(f"v_lshl_add_u32 v3, v3, 2, s{t0}")
    A(f"ds_write_b32 v3, v{Q}")
    A("s_waitcnt lgkmcnt(0)")
    A("s_barrier")
    stamp(A, c, 2)

def helper(A, c):
    t0, t1, t2, t3 = R.t0, R.t1, R.t2, R.t3
    bail = "H_end"
    if c.hprio: A(f"s_setprio {c.hprio}")
    NQ = 24
    SN = 20; ND = 52
    A(f"v_lshlrev_b32 v4, 4, v2")
    A(f"s_lshl_b32 s{t1}, s{R.sg}, 5"); A(f"s_add_u32 s{t2}, s{t1}, s{R.ss}")
    A(f"v_mov_b32 v16, s{t2}")
    A("v_and_b32 v6, 7, v2"); A("v_lshlrev_b32 v6, 2, v6"); A(f"v_add_u32 v6, s{t1}, v6")
    A("v_lshlrev_b32 v7, 2, v2")
    A("v_mov_b32 v13, 1")
    for i in range(4): A(f"v_mov_b32 v{8+i}, -1")
    def flag_store():
        setexec(A, 1)
        A(f"buffer_store_byte v13, v16, {S(R.sDbg)}, 0 offen sc1")
        A("s_mov_b64 exec, -1")
    A(f"s_cmp_ge_u32 s{R.ss}, {NS}"); A("s_cbranch_scc1 H_svc")
    A(f"s_lshl_b32 s{t0}, s{R.sg}, 13"); A(f"s_lshl_b32 s{t1}, s{R.ss}, 8"); A(f"s_add_u32 s{t1}, s{t0}, s{t1}")
    A(f"v_lshlrev_b32 v3, 2, v2"); A(f"v_add_u32 v14, s{t1}, v3")
    A(f"v_add_u32 v15, s{t0}, v4")
    A(f"s_movk_i32 s{R.s4k}, 0x1000")
    A(f"s_mul_i32 s{t2}, s{R.sg}, {NS}"); A(f"s_add_u32 s{t2}, s{t2}, s{R.ss}")
    A(f"s_lshl_b32 s{t0}, s{t2}, 10"); A(f"s_add_u32 s{t0}, s{t0}, {WS_PO}"); A(f"v_add_u32 v5, s{t0}, v4")
    A(f"s_lshl_b32 s{t0}, s{t2}, 5"); A(f"s_add_u32 s{t0}, s{t0}, {WS_ML}"); A(f"v_add_u32 v18, s{t0}, v4")
    A("s_waitcnt lgkmcnt(0)")
    stamp0(A, c, 1)
    srd(A, R.sW, 78, WS_SZ); srd(A, R.sDbg, 76, 256)
    A(f"buffer_load_dword v12, v14, {S(R.sW)}, 0 offen sc1")
    def qloads(base):
        for k in range(6):
            so = "0" if k < 4 else f"s{R.s4k}"
            A(f"buffer_load_dwordx4 v[{base+4*k}:{base+4*k+3}], v15, {S(R.sW)}, {so} offen offset:{(k&3)*1024} sc1")
    qloads(SN)
    if c.bar0: A("s_barrier")
    A(f"buffer_store_dwordx4 v[8:11], v5, {S(R.sW)}, 0 offen sc1")
    setexec(A, 3)
    A(f"buffer_store_dwordx4 v[8:11], v18, {S(R.sW)}, 0 offen sc1")
    A("s_mov_b64 exec, -1")
    A(f"v_lshlrev_b32 v19, 2, v2"); A(f"v_add_u32 v19, {L_QP}, v19")
    A(f"v_lshlrev_b32 v17, 3, v2"); A(f"v_add_u32 v17, {L_QL}, v17")
    A("s_waitcnt vmcnt(2)")
    stamp(A, c, 1)
    A("v_not_b32 v12, v12"); A("v_and_b32 v12, 1, v12")
    A("s_barrier")
    stamp(A, c, 2)
    for k in range(4): A(f"ds_read2st64_b32 v[{84+2*k}:{85+2*k}], v19 offset0:{2*k} offset1:{2*k+1}")
    A("s_waitcnt lgkmcnt(0)")
    for k in range(4): A(f"v_add_f32 v{84+2*k}, v{84+2*k}, v{85+2*k}")
    A("v_add_f32 v84, v84, v86"); A("v_add_f32 v88, v88, v90"); A("v_add_f32 v84, v84, v88")
    A("v_and_or_b32 v84, v84, -2, v12")
    A(f"buffer_store_dword v84, v14, {S(R.sW)}, 0 offen sc1")
    stamp(A, c, 3)
    lw = A.newlabel("hq")
    A(f"s_mov_b32 s{R.sSpin}, 0"); A(f"s_mov_b32 s{t3}, 0")
    A("v_mov_b32 v8, 0")
    qloads(ND)
    A.label(lw)
    A("s_waitcnt vmcnt(0)")
    if c.ts:
        sk = A.newlabel("g1"); A(f"s_cmp_lg_u32 s{R.sSpin}, 0"); A(f"s_cbranch_scc1 {sk}"); stamp(A, c, 8); A.label(sk)
    A(f"v_xor_b32 v9, v{SN}, v{ND}")
    for k in range(1, NQ): A(f"v_bitop3_b32 v9, v9, v{SN+k}, v{ND+k} bitop3:0x60")
    A("v_and_b32 v9, 1, v9")
    A("v_cmp_eq_u32 vcc, 0, v9")
    A(f"s_cbranch_vccz hq_done")
    A(f"s_cmp_lg_u32 s{t3}, 0"); A("s_cbranch_scc1 hq_done")
    A("v_cmp_ne_u32 vcc, 0x01010101, v8")
    A(f"s_cmp_eq_u64 vcc, 0"); A(f"s_cselect_b32 s{t3}, 1, 0")
    A(f"s_add_u32 s{R.sSpin}, s{R.sSpin}, 1"); A(f"s_cmp_gt_u32 s{R.sSpin}, {SPIN}"); A(f"s_cbranch_scc1 {bail}")
    nf = A.newlabel("hnf"); nf2 = A.newlabel("hnf2")
    A(f"s_cmp_lt_u32 s{R.sSpin}, {c.kf}"); A(f"s_cbranch_scc1 {nf}")
    A(f"s_cmp_gt_u32 s{R.sSpin}, {c.kf}"); A(f"s_cbranch_scc1 {nf2}")
    flag_store()
    A.label(nf2)
    A(f"buffer_load_dword v8, v6, {S(R.sDbg)}, 0 offen sc1")
    A.label(nf)
    qloads(ND)
    A(f"s_branch {lw}")
    A.label("hq_done")
    stamp(A, c, 4)
    if c.ts:
        A(f"v_writelane_b32 v{TS}, s{R.sSpin}, 20"); A(f"v_writelane_b32 v{TS}, s{t3}, 21")
    for k in range(NQ): A(f"v_and_b32 v{ND+k}, -2, v{ND+k}")
    for hf in range(2):
        for i in range(4):
            a = ND + 4*hf + i
            A(f"v_add_f32 v{a}, v{a}, v{a+8}")
        for i in range(4):
            a = ND + 4*hf + i
            A(f"v_add_f32 v{a}, v{a}, v{a+16}")
        a = ND + 4*hf
        A(f"v_cvt_pk_bf16_f32 v{84+2*hf}, v{a}, v{a+1}"); A(f"v_cvt_pk_bf16_f32 v{85+2*hf}, v{a+2}, v{a+3}")
    A("ds_write_b64 v17, v[84:85]"); A("ds_write_b64 v17, v[86:87] offset:512")
    A("s_waitcnt lgkmcnt(0)")
    stamp(A, c, 5)
    A("s_barrier")
    flag_store()
    A(f"s_branch {bail}")
    A.label("H_svc")
    A(f"s_sub_u32 s{t3}, s{R.ss}, {NS}")
    A(f"s_lshl_b32 s{t0}, s{R.sg}, 11"); A(f"s_lshl_b32 s{t1}, s{t3}, 8"); A(f"s_add_u32 s{t0}, s{t0}, s{t1}"); A(f"s_add_u32 s{t0}, s{t0}, {WS_AP}")
    A(f"v_add_u32 v18, s{t0}, v4")
    A(f"s_mul_i32 s{t0}, s{R.sg}, 7"); A(f"s_add_u32 s{t0}, s{t0}, s{t3}"); A(f"s_lshl_b32 s{t0}, s{t0}, 11"); A(f"s_add_u32 s{t0}, s{t0}, {WS_FP}")
    A(f"s_cmp_lt_u32 s{t3}, 7"); A(f"s_cselect_b32 s{t0}, s{t0}, {hex(OOR - 4096)}")
    A(f"v_add_u32 v5, s{t0}, v4")
    A(f"s_mul_i32 s{t0}, s{R.sg}, {NS*32}"); A(f"s_add_u32 s{t0}, s{t0}, {WS_ML}"); A(f"v_add_u32 v17, s{t0}, v4")
    A("s_waitcnt lgkmcnt(0)")
    stamp0(A, c, 1)
    srd(A, R.sW, 78, WS_SZ); srd(A, R.sDbg, 76, 256)
    A(f"buffer_store_dwordx4 v[8:11], v5, {S(R.sW)}, 0 offen sc1")
    A(f"buffer_store_dwordx4 v[8:11], v5, {S(R.sW)}, 0 offen offset:1024 sc1")
    setexec(A, 0xffff)
    A(f"buffer_store_dwordx4 v[8:11], v18, {S(R.sW)}, 0 offen sc1")
    A("s_mov_b64 exec, -1")
    A("s_waitcnt vmcnt(0)")
    stamp(A, c, 1)
    flag_store()
    def iss(): A(f"buffer_load_dword v8, v7, {S(R.sDbg)}, 0 offen sc1")
    def chk(): A("v_and_b32 v8, 0x01010101, v8"); A("v_cmp_ne_u32 vcc, 0x01010101, v8")
    poll(A, "ha", iss, chk, bail, sleep=c.hslp)
    stamp(A, c, 6)
    if c.thr:
        setexec(A, (1 << 48) - 1)
        def iss(): A(f"buffer_load_dwordx4 v[20:23], v17, {S(R.sW)}, 0 offen sc1")
        def chk():
            A("v_max3_u32 v24, v20, v21, v22"); A("v_max_u32 v24, v24, v23")
            A("v_cmp_ne_u32 vcc, -1, v24")
            A(f"s_bcnt1_i32_b64 s{t0}, vcc")
            A(f"s_cmp_lt_u32 s{t0}, {2*c.thr}"); A("s_cselect_b64 vcc, -1, 0")
        poll(A, "hm", iss, chk, bail, sleep=c.mslp)
        A("s_mov_b64 exec, -1")
    stamp(A, c, 7)
    A("s_barrier")
    A.label(bail)
    flush_ts(A, c)
    A("s_endpgm")

def ustamp(A, c, k):
    if c.ts < 2: return
    npair = (BASEU - 4) // 2
    A(f"s_memrealtime s[{R.sEx}:{R.sEx+1}]")
    A(f"s_lshl_b32 s{R.t0}, s{R.sCnt}, 1"); A(f"s_sub_u32 m0, {32 + 2*npair + k}, s{R.t0}")
    A("s_waitcnt lgkmcnt(0)"); A("s_nop 3"); A(f"v_writelane_b32 v{TS}, s{R.sEx}, m0")

def att_main(A, c):
    t0, t1, t2, t3 = R.t0, R.t1, R.t2, R.t3
    if c.late == 'A':
        for (wh, sl) in SLOTS[c.n0:]: att_issue(A, wh, sl)
    att_setup_addr2(A)
    att_init_state(A)
    A("v_and_b32 v5, 3, v2"); A("v_lshlrev_b32 v5, 8, v5"); A("v_lshrrev_b32 v6, 4, v2"); A("v_lshl_add_u32 v5, v6, 4, v5")
    A(f"v_add_u32 v5, {L_QL}, v5")
    A("s_barrier")
    stamp(A, c, 3)
    if c.late == 'B':
        for (wh, sl) in SLOTS[c.n0:]: att_issue(A, wh, sl)
    for j in range(4): A(f"ds_read_b128 v[{R.Q+4*j}:{R.Q+4*j+3}], v5 offset:{64*j}")
    A("s_waitcnt lgkmcnt(0)")
    att_unit(A, 0, 12, 12, True)
    stamp(A, c, 4)
    att_unit(A, 1, 12, 12, True)
    npair = (BASEU - 2 - 2) // 2
    odd = (BASEU - 2 - 2) % 2
    A(f"s_mov_b32 s{R.sCnt}, {npair}")
    lp = A.newlabel("attloop")
    A.label(lp)
    att_unit(A, 0, 12, 12, True)
    ustamp(A, c, 0)
    att_unit(A, 1, 12, 12, True)
    ustamp(A, c, 1)
    A(f"s_sub_u32 s{R.sCnt}, s{R.sCnt}, 1"); A(f"s_cmp_lg_u32 s{R.sCnt}, 0"); A(f"s_cbranch_scc1 {lp}")
    p = 0
    if odd:
        att_unit(A, 0, 12, 12, True); p = 1
    ex = A.newlabel("noextra")
    A(f"s_cmp_lt_u32 s{R.ss}, {XHI}"); A(f"s_cselect_b32 s{t0}, {XLO+1}, {XLO}"); A(f"s_cmp_ge_u32 s3, s{t0}"); A(f"s_cbranch_scc1 {ex}")
    A(f"s_lshl_b32 s{t0}, s{R.sg}, 24"); A(f"s_add_u32 s{t0}, s{t0}, {NS*BASEU*32768}")
    A(f"s_mul_i32 s{t1}, s{R.ss}, {XLO}"); A(f"s_min_u32 s{t2}, s{R.ss}, {XHI}"); A(f"s_add_u32 s{t1}, s{t1}, s{t2}"); A(f"s_add_u32 s{t1}, s{t1}, s3"); A(f"s_lshl_b32 s{t1}, s{t1}, 12")
    A(f"s_add_u32 s{R.sOffK}, s{t0}, s{t1}"); A(f"s_mov_b32 s{R.sOffV}, s{R.sOffK}")
    att_unit(A, p, 12, 12, True)
    m_addr_safe(A)
    att_unit(A, 1 - p, 12, 8, False); att_unit(A, p, 4, 0, False)
    A("s_branch L_attdone")
    A.label(ex)
    m_addr_safe(A)
    att_unit(A, p, 12, 8, False); att_unit(A, 1 - p, 4, 0, False)
    A.label("L_attdone")
    stamp(A, c, 5)
    stage_M(A, c)

def m_addr_safe(A):
    m_addr(A)

WW = 100; GW = 132; DWt = 60; XU = 164
def perm_rows(A, base):
    T = 98
    for p in range(4):
        for i in range(4):
            a = base + 8*p + i; b = a + 4
            A(f"v_perm_b32 v{T}, v{b}, v{a}, s{R.sLo}")
            A(f"v_perm_b32 v{b}, v{b}, v{a}, s{R.sHi}")
            A(f"v_mov_b32 v{a}, v{T}")

def gemv64(A, base, x, acc):
    for p in range(4):
        for i in range(4):
            for e in range(2):
                src2 = "0" if p == 0 else f"v{acc+2*i+e}"
                A(f"v_dot2_f32_bf16 v{acc+2*i+e}, v{x+p}, v{base+8*p+4*e+i}, {src2}")
    bank_rs(A, [(acc+j, acc+4+j) for j in range(4)], 'hm')
    dpp_red(A, 'add', [acc+j for j in range(4)], ['q1', 'q2'])

def svc_main(A, c):
    t0, t1, t2, t3 = R.t0, R.t1, R.t2, R.t3
    end = "M_end"
    NT = " nt" if c.wnt else ""
    sSV = 96; sFB = 97
    A(f"s_sub_u32 s{sSV}, s{R.ss}, {NS}")
    A(f"s_mul_i32 s{sFB}, s{R.sg}, 7"); A(f"s_add_u32 s{sFB}, s{sFB}, s{sSV}")
    A(f"s_mov_b32 s{R.sLo}, 0x05040100"); A(f"s_mov_b32 s{R.sHi}, 0x07060302")
    A("s_waitcnt lgkmcnt(0)")
    stamp0(A, c, 1)
    srd(A, R.sW, 78, WS_SZ); srd(A, R.sWo, 64, 4096*1024); srd(A, R.sG, 68, 512*3584); srd(A, R.sU, 70, 512*3584)
    srd(A, R.sD, 72, 1792*1024); srd(A, R.sOut, 74, 1024); srd(A, R.sX, 56, 1024)
    for q in range(1, 8): A(f"s_mov_b32 s{86+q}, {4096*q}")
    A("v_and_b32 v3, 7, v2"); A("v_lshrrev_b32 v4, 3, v2")
    A(f"s_lshl_b32 s98, s{R.sg}, 19"); A(f"s_lshl_b32 s99, s3, 16"); A(f"s_add_u32 s98, s98, s99"); A(f"s_lshl_b32 s99, s{sSV}, 7"); A(f"s_add_u32 s98, s98, s99")
    A("v_lshlrev_b32 v5, 13, v3"); A("v_lshl_add_u32 v5, v4, 4, v5"); A("v_add_u32 v5, s98, v5")
    for j in range(8):
        so = "0" if j < 4 else "s87"
        if 'o' in c.wl: A(f"buffer_load_dwordx4 v[{WW+4*j}:{WW+4*j+3}], v5, {S(R.sWo)}, {so} offen offset:{(j&3)*1024}{NT}")
    A("v_and_b32 v6, 15, v2"); A("v_lshlrev_b32 v6, 2, v6"); A("v_bfe_u32 v7, v2, 5, 1"); A("v_lshl_add_u32 v6, v7, 1, v6"); A("v_bfe_u32 v7, v2, 4, 1"); A("v_add_u32 v6, v6, v7")
    A("s_lshl_b32 s98, s3, 6"); A("v_add_u32 v6, s98, v6")
    A("v_lshlrev_b32 v7, 1, v6")
    A(f"buffer_load_ushort v{XU}, v7, {S(R.sX)}, 0 offen")
    nof = A.newlabel("nof")
    A(f"s_cmp_ge_u32 s{sSV}, 7"); A(f"s_cbranch_scc1 {nof}")
    A("s_lshl_b32 s98, s3, 6"); A("v_lshlrev_b32 v8, 3, v3"); A("v_add_u32 v8, s98, v8"); A("v_mul_u32_u24 v8, 3584, v8")
    A("v_and_b32 v9, 3, v4"); A("v_lshl_add_u32 v8, v9, 4, v8"); A(f"s_lshl_b32 s98, s{sFB}, 6"); A("v_add_u32 v8, s98, v8")
    for half, srdn in ((0, R.sG), (1, R.sU)):
        setexec(A, 0xffffffff << (32*half))
        for j in range(8):
            if j == 0: so = "0"
            else:
                so = "s99"; A(f"s_mov_b32 s99, {3584*j}")
            if 'g' in c.wl: A(f"buffer_load_dwordx4 v[{GW+4*j}:{GW+4*j+3}], v8, {S(srdn)}, {so} offen{NT}")
    A("s_mov_b64 exec, -1")
    A(f"s_lshl_b32 s98, s{sFB}, 15"); A("s_lshl_b32 s99, s3, 7"); A("s_add_u32 s98, s98, s99")
    A("v_lshlrev_b32 v9, 1, v2"); A("v_add_u32 v9, s98, v9")
    for r in range(32):
        so = "0" if r < 4 else f"s{86 + (r >> 2)}"
        if 'd' in c.wl: A(f"buffer_load_ushort v{20+r}, v9, {S(R.sD)}, {so} offen offset:{(r&3)*1024}{NT}")
    A("s_waitcnt vmcnt(0)")
    for r in range(16): A(f"v_lshl_or_b32 v{DWt+r}, v{21+2*r}, 16, v{20+2*r}")
    perm_rows(A, GW)
    A.label(nof)
    A("s_waitcnt vmcnt(0)")
    stamp(A, c, 3)
    perm_rows(A, WW)
    A(f"v_lshlrev_b32 v{XU}, 16, v{XU}")
    OG, MLG, WPW, WPR, APS, APG, HBW, HNW, HNR, FSW = range(10, 20)
    FSR, FPW, FPR, FPS, FG, HBR, OUTS = range(86, 93)
    A(f"s_mul_i32 s{t0}, s{R.sg}, {NS*1024}"); A(f"s_lshl_b32 s{t1}, s3, 7"); A(f"s_add_u32 s{t0}, s{t0}, s{t1}"); A(f"s_add_u32 s{t0}, s{t0}, {WS_PO}")
    A(f"v_lshlrev_b32 v{OG}, 10, v4"); A(f"v_lshl_add_u32 v{OG}, v3, 4, v{OG}"); A(f"v_add_u32 v{OG}, s{t0}, v{OG}")
    A(f"s_mul_i32 s{t0}, s{R.sg}, {NS*32}"); A(f"s_lshr_b32 s{t1}, s3, 1"); A(f"s_lshl_b32 s{t1}, s{t1}, 3"); A(f"s_add_u32 s{t0}, s{t0}, s{t1}"); A(f"s_add_u32 s{t0}, s{t0}, {WS_ML}")
    A(f"v_lshlrev_b32 v{MLG}, 5, v4"); A(f"v_add_u32 v{MLG}, s{t0}, v{MLG}")
    A(f"s_lshl_b32 s{t0}, s3, 8"); A("v_lshrrev_b32 v5, 2, v2"); A("v_lshlrev_b32 v5, 4, v5"); A(f"v_add_u32 v5, s{t0}, v5")
    A(f"v_add_u32 v{WPW}, {L_WP}, v5"); A(f"v_add_u32 v{FPW}, {L_FP}, v5")
    A("v_lshlrev_b32 v5, 2, v2"); A(f"v_add_u32 v{WPR}, {L_WP}, v5"); A(f"v_add_u32 v{FPR}, {L_FP}, v5")
    A(f"s_lshl_b32 s{t0}, s{R.sg}, 11"); A(f"s_lshl_b32 s{t1}, s{sSV}, 8"); A(f"s_add_u32 s{t0}, s{t0}, s{t1}"); A(f"s_add_u32 s{t0}, s{t0}, {WS_AP}")
    A(f"v_add_u32 v{APS}, s{t0}, v5")
    A(f"s_lshl_b32 s{t0}, s{sFB}, 11"); A(f"s_lshl_b32 s{t1}, s3, 8"); A(f"s_add_u32 s{t0}, s{t0}, s{t1}"); A(f"s_add_u32 s{t0}, s{t0}, {WS_FP}")
    A(f"v_add_u32 v{FPS}, s{t0}, v5")
    A("v_and_b32 v5, 15, v2"); A("v_lshrrev_b32 v7, 4, v2"); A("v_lshlrev_b32 v7, 12, v7"); A("v_lshl_add_u32 v7, v5, 4, v7")
    A(f"s_add_u32 s{t1}, s{t1}, {WS_AP}"); A(f"v_add_u32 v{APG}, s{t1}, v7")
    A(f"v_lshlrev_b32 v{HBW}, 2, v6"); A(f"v_add_u32 v{HBW}, {L_HB}, v{HBW}")
    A(f"v_lshlrev_b32 v{HNW}, 1, v6"); A(f"v_add_u32 v{HNW}, {L_HN}, v{HNW}")
    A(f"s_lshl_b32 s{t0}, s3, 7"); A(f"s_add_u32 s{t0}, s{t0}, {L_HN}"); A(f"v_lshl_add_u32 v{HNR}, v3, 4, s{t0}")
    A(f"s_lshl_b32 s{t0}, s3, 3"); A(f"s_add_u32 s{t0}, s{t0}, {L_FS}"); A(f"v_mov_b32 v{FSW}, s{t0}")
    A(f"v_lshlrev_b32 v{FSR}, 3, v3"); A(f"v_add_u32 v{FSR}, {L_FS}, v{FSR}")
    A(f"s_lshl_b32 s{t0}, s{R.sg}, 1"); A(f"s_add_u32 s{t0}, s{t0}, s3")
    A(f"s_lshl_b32 s{t1}, s{t0}, 7"); A(f"s_add_u32 s{t1}, s{t1}, {WS_FP}")
    A(f"v_lshlrev_b32 v5, 11, v4"); A(f"v_lshl_add_u32 v5, v3, 4, v5"); A(f"v_add_u32 v{FG}, s{t1}, v5")
    A("v_lshlrev_b32 v5, 2, v3"); A("v_bfe_u32 v7, v2, 5, 1"); A("v_lshl_add_u32 v5, v7, 1, v5"); A("v_bfe_u32 v7, v2, 4, 1"); A("v_add_u32 v5, v5, v7")
    A(f"s_lshl_b32 s{t0}, s{t0}, 5"); A(f"v_add_u32 v5, s{t0}, v5")
    A(f"v_lshlrev_b32 v{OUTS}, 1, v5"); A(f"v_lshlrev_b32 v{HBR}, 2, v5"); A(f"v_add_u32 v{HBR}, {L_HB}, v{HBR}")
    A("s_mov_b32 s98, 8192"); A("s_mov_b32 s99, 16384")
    stamp(A, c, 4)
    A("s_barrier")
    stamp(A, c, 7)
    O = 20; ML = 32; M = 38; FH = 40; FL = 43; AC = 76; L = 84
    def ld(j):
        A(f"buffer_load_dwordx2 v[{ML+2*j}:{ML+2*j+1}], v{MLG}, {S(R.sW)}, 0 offen offset:{256*j} sc1")
        so = ["0", "s98", "s99"][j]
        A(f"buffer_load_dwordx4 v[{O+4*j}:{O+4*j+3}], v{OG}, {S(R.sW)}, {so} offen sc1")
    mpoll(A, c, "wg", 3, ld, lambda j: list(range(O+4*j, O+4*j+4)) + [ML+2*j, ML+2*j+1], 39, end, c.sslp)
    stamp(A, c, 9)
    A(f"v_max3_f32 v{M}, v{ML}, v{ML+2}, v{ML+4}")
    allred(A, 'max', M, ['r8', 'p16', 'p32'], 39)
    for j in range(3): A(f"v_sub_f32 v{FH+j}, v{ML+2*j}, v{M}")
    for j in range(3): A(f"v_exp_f32 v{FH+j}, v{FH+j}")
    for j in range(3): A(f"v_cvt_pk_bf16_f32 v{FL+j}, v{FH+j}, v{FH+j}")
    for j in range(3): A(f"v_lshlrev_b32 v{FH+j}, 16, v{FL+j}")
    for j in range(3): A(f"v_lshrrev_b32 v{FL+j}, 16, v{FH+j}")
    A(f"v_mul_f32 v{L}, v{FH}, v{ML+1}"); A(f"v_fmac_f32 v{L}, v{FH+1}, v{ML+3}"); A(f"v_fmac_f32 v{L}, v{FH+2}, v{ML+5}")
    for j in range(3):
        for i in range(4):
            for e in range(2):
                src2 = "0" if j == 0 else f"v{AC+2*i+e}"
                A(f"v_dot2_f32_bf16 v{AC+2*i+e}, v{O+4*j+i}, v{(FH if e else FL)+j}, {src2}")
    allred(A, 'add', L, ['r8', 'p16', 'p32'], 39)
    rs32(A, [(AC+j, AC+4+j) for j in range(4)])
    rs16(A, [(AC, AC+2), (AC+1, AC+3)])
    A(f"v_rcp_f32 v{L}, v{L}")
    dpp_red(A, 'add', [AC, AC+1], ['r8'])
    A(f"v_mul_f32 v{AC}, v{AC}, v{L}"); A(f"v_mul_f32 v{AC+1}, v{AC+1}, v{L}")
    X = 44
    A(f"v_cvt_pk_bf16_f32 v{X}, v{AC}, v{AC+1}")
    A(f"v_mov_b32 v{X+1}, v{X}"); A(f"v_permlane16_swap_b32 v{X}, v{X+1}")
    A(f"v_mov_b32 v{X+2}, v{X}"); A(f"v_mov_b32 v{X+3}, v{X+1}")
    A(f"v_permlane32_swap_b32 v{X}, v{X+2}"); A(f"v_permlane32_swap_b32 v{X+1}, v{X+3}")
    gemv64(A, WW, X, AC)
    setexec(A, 0x1111111111111111)
    A(f"ds_write_b128 v{WPW}, v[{AC}:{AC+3}]")
    A("s_mov_b64 exec, -1")
    A("s_waitcnt lgkmcnt(0)")
    A("s_barrier")
    sk = A.newlabel("wskip")
    A("s_cmp_lg_u32 s3, 0"); A(f"s_cbranch_scc1 {sk}")
    for k in range(4): A(f"ds_read2st64_b32 v[{44+2*k}:{45+2*k}], v{WPR} offset0:{2*k} offset1:{2*k+1}")
    A("s_waitcnt lgkmcnt(0)")
    for k in range(4): A(f"v_add_f32 v{44+2*k}, v{44+2*k}, v{45+2*k}")
    A("v_add_f32 v44, v44, v46"); A("v_add_f32 v48, v48, v50"); A("v_add_f32 v44, v44, v48")
    A("v_min_u32 v44, -2, v44")
    A(f"buffer_store_dword v44, v{APS}, {S(R.sW)}, 0 offen sc1")
    A.label(sk)
    stamp(A, c, 10)
    def ld(n): A(f"buffer_load_dwordx4 v[{20+4*n}:{23+4*n}], v{APG}, {S(R.sW)}, 0 offen offset:{2048*n} sc1")
    mpoll(A, c, "fg", 2, ld, lambda n: list(range(20+4*n, 24+4*n)), 28, end, 1)
    stamp(A, c, 11)
    for i in range(4): A(f"v_add_f32 v{20+i}, v{20+i}, v{24+i}")
    rs32(A, [(20, 22), (21, 23)])
    rs16(A, [(20, 21)])
    H = 20
    rnd_bf16(A, H)
    A(f"v_add_f32 v{H}, v{H}, v{XU}")
    rnd_bf16(A, H)
    A(f"ds_write_b32 v{HBW}, v{H}")
    A(f"v_mov_b32 v22, v{H}"); A(f"v_mul_f32 v23, v{H}, v{H}")
    allred_multi(A, 'add', [22, 23], FULL, [24, 25])
    setexec(A, 1)
    A(f"ds_write_b64 v{FSW}, v[22:23]")
    A("s_mov_b64 exec, -1")
    A("s_waitcnt lgkmcnt(0)")
    A("s_barrier")
    A(f"s_cmp_ge_u32 s{sSV}, 7"); A("s_cbranch_scc1 L_final")
    A(f"ds_read_b64 v[22:23], v{FSR}")
    A("s_waitcnt lgkmcnt(0)")
    dpp_red(A, 'add', [22, 23], ['q1', 'q2', 'hm'])
    A("v_mul_f32 v22, 0x3b000000, v22"); A("v_mul_f32 v23, 0x3b000000, v23")
    A("v_fma_f32 v23, -v22, v22, v23")
    rnd_bf16_pair(A, 22, 23, 24)
    A(f"v_add_f32 v23, {EPS}, v23")
    rnd_bf16(A, 23)
    A("v_sqrt_f32 v23, v23")
    A(f"v_sub_f32 v{H}, v{H}, v22")
    rnd_bf16(A, 23)
    rnd_bf16(A, H)
    A("v_rcp_f32 v24, v23")
    A(f"v_mul_f32 v25, v{H}, v24"); A(f"v_fma_f32 v{H}, -v25, v23, v{H}"); A(f"v_fma_f32 v{H}, v{H}, v24, v25")
    A(f"v_cvt_pk_bf16_f32 v{H}, v{H}, v{H}")
    A(f"ds_write_b16 v{HNW}, v{H}")
    A(f"ds_read_b128 v[{X}:{X+3}], v{HNR}")
    A("s_waitcnt lgkmcnt(0)")
    gemv64(A, GW, X, AC)
    setexec(A, 0x1111111111111111)
    A(f"ds_write_b128 v{FPW}, v[{AC}:{AC+3}]")
    A("s_mov_b64 exec, -1")
    A("s_waitcnt lgkmcnt(0)")
    A("s_barrier")
    for k in range(4): A(f"ds_read2st64_b32 v[{44+2*k}:{45+2*k}], v{FPR} offset0:{2*k} offset1:{2*k+1}")
    A("s_waitcnt lgkmcnt(0)")
    for k in range(4): A(f"v_add_f32 v{44+2*k}, v{44+2*k}, v{45+2*k}")
    A("v_add_f32 v44, v44, v46"); A("v_add_f32 v48, v48, v50"); A("v_add_f32 v44, v44, v48")
    A("v_mov_b32 v45, v44"); A("v_permlane32_swap_b32 v44, v45")
    rnd_bf16_pair(A, 44, 45, 46)
    gelu_mul(A, 44, 45, 46)
    A(f"v_mov_b32_dpp v45, v44 quad_perm:[1,0,3,2] {DPPM}")
    A("v_and_b32 v44, 0xffff, v44"); A("v_lshl_or_b32 v44, v45, 16, v44")
    for r in range(16): A(f"v_readlane_b32 s{60+r}, v44, {2*r}")
    for r in range(16):
        src2 = "0" if r < 2 else f"v{46+(r&1)}"
        A(f"v_dot2_f32_bf16 v{46+(r&1)}, s{60+r}, v{DWt+r}, {src2}")
    A("v_add_f32 v46, v46, v47")
    A("v_min_u32 v46, -2, v46")
    A(f"buffer_store_dword v46, v{FPS}, {S(R.sW)}, 0 offen sc1")
    stamp(A, c, 12)
    A(f"s_branch {end}")
    A.label("L_final")
    A("s_cmp_ge_u32 s3, 2"); A(f"s_cbranch_scc1 {end}")
    A(f"ds_read_b32 v19, v{HBR}")
    for j in range(1, 7): A(f"s_mov_b32 s{60+j}, {16384*j}")
    def ld(j):
        so = "0" if j == 0 else f"s{60+j}"
        A(f"buffer_load_dwordx4 v[{20+4*j}:{23+4*j}], v{FG}, {S(R.sW)}, {so} offen sc1")
    mpoll(A, c, "dg", 7, ld, lambda j: list(range(20+4*j, 24+4*j)), 48, end, 1)
    stamp(A, c, 13)
    for i in range(4):
        A(f"v_add_f32 v{20+i}, v{20+i}, v{24+i}"); A(f"v_add_f32 v{28+i}, v{28+i}, v{32+i}"); A(f"v_add_f32 v{36+i}, v{36+i}, v{40+i}")
    for i in range(4):
        A(f"v_add_f32 v{20+i}, v{20+i}, v{28+i}"); A(f"v_add_f32 v{36+i}, v{36+i}, v{44+i}")
    for i in range(4): A(f"v_add_f32 v{20+i}, v{20+i}, v{36+i}")
    rs32(A, [(20, 22), (21, 23)])
    rs16(A, [(20, 21)])
    dpp_red(A, 'add', [20], ['r8'])
    rnd_bf16(A, 20)
    A("s_waitcnt lgkmcnt(0)")
    A("v_add_f32 v20, v20, v19")
    A("v_cvt_pk_bf16_f32 v20, v20, v20")
    setexec(A, 0x00ff00ff00ff00ff)
    A(f"buffer_store_short v20, v{OUTS}, {S(R.sOut)}, 0 offen")
    A("s_mov_b64 exec, -1")
    stamp(A, c, 14)

def main_waves(A, c):
    t0, t1 = R.t0, R.t1
    end = "M_end"
    A(f"s_cmp_ge_u32 s{R.ss}, {NS}"); A("s_cbranch_scc1 L_svc")
    att_setup_addr(A)
    A(f"s_lshl_b32 s{t0}, s{R.sg}, 24"); A(f"s_mul_i32 s{t1}, s{R.ss}, {BASEU*32768}"); A(f"s_add_u32 s{t0}, s{t0}, s{t1}")
    A(f"s_lshl_b32 s{t1}, s3, 12"); A(f"s_add_u32 s{R.sOffK}, s{t0}, s{t1}"); A(f"s_mov_b32 s{R.sOffV}, s{R.sOffK}")
    q_phase(A, c)
    for (wh, sl) in SLOTS[:c.n0]: att_issue(A, wh, sl)
    q_phase2(A, c, 4 * c.n0)
    att_main(A, c)
    A(f"s_branch {end}")
    A.label("L_svc")
    svc_main(A, c)
    A.label(end)
    stamp(A, c, 15)
    flush_ts(A, c)
    A("s_endpgm")

def gen(c=None):
    c = c or Cfg()
    A = Asm()
    A("s_cmp_ge_u32 s2, 256")
    A("s_cbranch_scc1 K_exit")
    stamp0(A, c, 0)
    A("s_load_dwordx16 s[56:71], s[0:1], 0")
    A("s_load_dwordx8 s[72:79], s[0:1], 64")
    A("v_lshrrev_b32 v1, 6, v0")
    A("v_readfirstlane_b32 s3, v1")
    A("v_and_b32 v2, 63, v0")
    if c.ts: A(f"v_mov_b32 v{TS}, 0")
    A(f"s_and_b32 s{R.sg}, s2, 7"); A(f"s_lshr_b32 s{R.ss}, s2, 3")
    A("s_cmp_eq_u32 s3, 8")
    A("s_cbranch_scc1 K_helper")
    main_waves(A, c)
    A.label("K_helper")
    helper(A, c)
    A.label("K_exit")
    A("s_endpgm")
    out = f"; fused pre-LN GQA attention + GEGLU FFN decode step : 192 attention + 64 service workgroups, 8 main waves + 1 hand-off wave\n"
    out += f"; @launch grid=(256,1,1) block=(576,1,1) lds={LDS}\n"
    out += '.amdgcn_target "amdgcn-amd-amdhsa--gfx950"\n.text\n'
    out += khead(KNAME) + A.finalize()
    out += '.section .rodata,"a"\n.p2align 6\n' + kdesc(KNAME, 168, sgpr=102)
    return out

if __name__ == "__main__":
    kw = {}
    for a in sys.argv[2:]:
        k, v = a.split("=")
        kw[k] = int(v) if v.lstrip('-').isdigit() else v
    open(sys.argv[1], "w").write(gen(Cfg(**kw)))
```
